```python
import torch

def _softmax(x, axis=-1):
    return torch.softmax(x, dim=axis)
def _gelu(x):
    return torch.nn.functional.gelu(x, approximate="tanh")
def _silu(x):
    return torch.nn.functional.silu(x)
def _sigmoid(x):
    return torch.sigmoid(x)
def _layernorm(x, axis=-1, eps=1e-5):
    m = x.mean(dim=axis, keepdim=True)
    v = x.var(dim=axis, keepdim=True, unbiased=False)
    return (x - m) / torch.sqrt(v + eps)
def _scatter_add(tgt, idx, src, axis=0):
    return tgt.clone().index_add_(axis, idx, src)
def _segment_sum(src, seg, n):
    out = torch.zeros((n,) + src.shape[1:], dtype=src.dtype)
    return out.index_add_(0, seg, src)
def _pad(x, pw):
    flat = tuple(v for pair in reversed(pw) for v in pair)
    return torch.nn.functional.pad(x, flat)

kernel_name = 'parallel_sum__spectral_fnet__dense_activation_relu__prompt'

def setup_inputs():

    _w = (lambda a: (lambda t: t.to(torch.bfloat16) if t.is_floating_point() else t)(torch.as_tensor(a)))
    def _A_setup():
        B, S, D = 1, 2048, 640
        ns = torch.arange(S)[:, None] * torch.arange(S)[None, :]
        nd = torch.arange(D)[:, None] * torch.arange(D)[None, :]
        Ws_re = torch.cos(-2.0 * torch.pi * ns / S).to(float)
        Ws_im = torch.sin(-2.0 * torch.pi * ns / S).to(float)
        Wd_re = torch.cos(-2.0 * torch.pi * nd / D).to(float)
        Wd_im = torch.sin(-2.0 * torch.pi * nd / D).to(float)
        return {
            "x": _w((lambda *s: torch.randn(*s, dtype=torch.bfloat16) * 0.05)(B, S, D)),
            "dft_seq_re": _w(Ws_re),
            "dft_seq_im": _w(Ws_im),
            "dft_hid_re": _w(Wd_re),
            "dft_hid_im": _w(Wd_im),
        }
    _A_in = _A_setup()

    def _B_setup():
        B, S, D, Dff = 1, 2048, 640, 1728
        return {
            "x": _w((lambda *s: torch.randn(*s, dtype=torch.bfloat16) * 0.05)(B, S, D)),
            "w1": _w((lambda *s: torch.randn(*s, dtype=torch.bfloat16) * 0.4)(D, Dff)),
            "w2": _w((lambda *s: torch.randn(*s, dtype=torch.bfloat16) * 0.4)(Dff, D)),
        }
    _B_in = _B_setup()

    return {
        "A_x": _A_in["x"],
        "A_dft_seq_re": _A_in["dft_seq_re"],
        "A_dft_seq_im": _A_in["dft_seq_im"],
        "A_dft_hid_re": _A_in["dft_hid_re"],
        "A_dft_hid_im": _A_in["dft_hid_im"],
        "B_x": _B_in["x"],
        "B_w1": _B_in["w1"],
        "B_w2": _B_in["w2"],
    }

def reference(A_x, A_dft_seq_re, A_dft_seq_im, A_dft_hid_re, A_dft_hid_im, B_x, B_w1, B_w2):
    def _A_ref(x, dft_seq_re, dft_seq_im, dft_hid_re, dft_hid_im):
        a = torch.einsum("bsd,ed->bse", x, dft_hid_re)
        b = torch.einsum("bsd,ed->bse", x, dft_hid_im)
        y = torch.einsum("ts,bse->bte", dft_seq_re, a) - torch.einsum("ts,bse->bte", dft_seq_im, b)
        return y

    def _B_ref(x, w1, w2):
        h = torch.einsum("bsd,df->bsf", x, w1)
        zero = torch.zeros_like(h)
        h = torch.maximum(h, zero)
        return torch.einsum("bsf,fd->bsd", h, w2)

    x = A_x
    xn = _layernorm(x, axis=-1)
    return x + _A_ref(xn, A_dft_seq_re, A_dft_seq_im, A_dft_hid_re, A_dft_hid_im) + _B_ref(xn, B_w1, B_w2)
```

```python
class Asm:
    def __init__(self):
        self.lines = []
    def __call__(self, s):
        for l in s.strip("\n").split("\n"):
            self.lines.append(l)
    def label(self, n): self.lines.append(n + ":")
    def text(self): return "\n".join(self.lines) + "\n"

def kernel_header(name):
    return f""".globl {name}
.p2align 8
.type {name},@function
{name}:
"""
def kernel_desc(name, vgpr, sgpr=102, accum=None):
    if accum is None: accum = (vgpr + 3) // 4 * 4
    return f""".amdhsa_kernel {name}
  .amdhsa_next_free_vgpr {vgpr}
  .amdhsa_next_free_sgpr {sgpr}
  .amdhsa_accum_offset {accum}
  .amdhsa_group_segment_fixed_size 0
  .amdhsa_kernarg_size 88
  .amdhsa_user_sgpr_count 2
  .amdhsa_user_sgpr_kernarg_segment_ptr 1
  .amdhsa_system_sgpr_workgroup_id_x 1
.end_amdhsa_kernel
"""
```

```python
from asmlib import *
HEAD = open("parallel_sum__spectral_fnet__dense_activation_relu__prompt.s.ref").read().split("; Override")[0]
WS_HF, WS_W2F, WS_Y1 = 0, 8 << 20, 12 << 20
SZ_HF, SZ_W2F, SZ_Y1 = 32*54*4096, 8*54*5120, 2*64*32*640
SZ_X = 2048*1280
SZ_WS = 2048*4096
SZ_WD = 640*1280
SZ_W1 = 640*3456
SZ_W2 = 1728*1280
OOB = 0x7fff0000

def srd(a, d, lo, size):
    a(f"  s_mov_b32 s{d}, s{lo}\n  s_mov_b32 s{d+1}, s{lo+1}\n  s_mov_b32 s{d+2}, {size}\n  s_mov_b32 s{d+3}, 0x00020000")
def srd_off(a, d, lo, off, size):
    a(f"  s_add_u32 s{d}, s{lo}, {off}\n  s_addc_u32 s{d+1}, s{lo+1}, 0\n  s_mov_b32 s{d+2}, {size}\n  s_mov_b32 s{d+3}, 0x00020000")
def vr(b, n=4): return f"v[{b}:{b+n-1}]"
def ar(b, n=4): return f"a[{b}:{b+n-1}]"
def sr(b, n=4): return f"s[{b}:{b+n-1}]"
def mfma(d, A, B, c):
    return f"  v_mfma_f32_16x16x32_bf16 {d}, {A}, {B}, {c}"
```

```python
from gen_common import *

sX, sB, sO, sW2, sW2F, sRE, sIM = 24, 28, 32, 36, 40, 44, 48
sW, sJ, sG0, sP = 52, 53, 54, 55
sT0, sT1, sT2, sT3 = 56, 57, 58, 59
sM, sK, sCnt, sPW = 60, 61, 62, 63
sRole = 64
sQ = 65
sSgn = 66
sC640, sEps = 67, 68
vLane, vR8, vC8, vN, vG = 1, 2, 3, 4, 5
vT = 6
vXo = 14
vXw1 = 15
RAW = 16
UNP = 56
SUM, SQ = 136, 144
vMean, vRs, vC0, vSg = 152, 154, 156, 158
vAD = 160
F_AD = 160
ACC = 176

XN_PITCH = 1280
RING = 81920

def w_params(role):
    nb = 5 if role == "W" else 4
    pitch = nb * 128
    return dict(nb=nb, pitch=pitch, PC=pitch//16, SLOT=32*pitch, L=nb)

def common_entry(a, name):
    a(kernel_header(name))
    a(f"""
  s_cmp_ge_u32 s2, 256
  s_cbranch_scc1 L_{name}_end
  s_load_dwordx2 s[4:5], s[0:1], 0
  s_load_dwordx4 s[8:11], s[0:1], 8
  s_load_dwordx4 s[12:15], s[0:1], 24
  s_load_dwordx4 s[16:19], s[0:1], 48
  s_load_dwordx2 s[20:21], s[0:1], 80
  v_lshrrev_b32 v{vT}, 6, v0
  v_and_b32 v{vLane}, 63, v0
  v_readfirstlane_b32 s{sW}, v{vT}
  v_lshrrev_b32 v{vR8}, 3, v{vLane}
  v_and_b32 v{vC8}, 7, v{vLane}
  v_and_b32 v{vN}, 15, v{vLane}
  v_lshrrev_b32 v{vG}, 4, v{vLane}
  ; decode
  s_and_b32 s{sT0}, s2, 7
  s_lshr_b32 s{sT1}, s2, 3            ; m
  s_lshr_b32 s{sT2}, s{sT0}, 1        ; r
  s_and_b32 s{sP}, s{sT0}, 1          ; cc
  s_lshl_b32 s{sT2}, s{sT2}, 3
  s_lshr_b32 s{sT3}, s{sT1}, 2
  s_add_u32 s{sJ}, s{sT2}, s{sT3}     ; j
  s_and_b32 s{sT1}, s{sT1}, 3         ; rl
  s_mov_b32 s{sT0}, 0x000F0500
  s_cmp_eq_u32 s{sP}, 0
  s_cselect_b32 s{sT0}, s{sT0}, 0x0017130A
  s_lshl_b32 s{sT2}, s{sT1}, 3
  s_lshr_b32 s{sT0}, s{sT0}, s{sT2}
  s_and_b32 s{sG0}, s{sT0}, 0xff
  s_cmp_lt_u32 s{sG0}, 15
  s_cselect_b32 s{sRole}, 0, 1
  s_cmp_eq_u32 s{sT1}, 3
  s_cselect_b32 s{sRole}, 2, s{sRole}
  s_and_b32 s{sPW}, s{sW}, 3
  s_mov_b32 s{sC640}, 0x3acccccd
  s_mov_b32 s{sEps}, 0x3727c5ac
  s_lshl_b32 s{sT0}, s{sW}, 3
  v_add_u32 v{vT}, s{sT0}, v{vR8}          ; i
  v_and_b32 v{vT+1}, 31, v{vT}
  v_lshlrev_b32 v{vT+1}, 6, v{vT+1}
  v_lshrrev_b32 v{vT+2}, 5, v{vT}
  v_lshlrev_b32 v{vT+2}, 5, v{vT+2}
  v_add3_u32 v{vT+1}, v{vT+1}, v{vT+2}, s{sJ}
  v_mul_u32_u24 v{vT+1}, 1280, v{vT+1}
  v_lshlrev_b32 v{vT+2}, 4, v{vC8}
  v_add_u32 v{vXo}, v{vT+1}, v{vT+2}
  s_waitcnt lgkmcnt(0)
""")
    srd(a, sX, 4, SZ_X)
    for u in range(10):
        a(f"  buffer_load_dwordx4 {vr(RAW+4*u)}, v{vXo}, {sr(sX)}, 0 offen offset:{128*u}")
    a(f"""
  s_cmp_eq_u32 s{sRole}, 2
  s_cbranch_scc1 L_F_pre
  s_cmp_eq_u32 s{sRole}, 1
  s_cbranch_scc1 L_N_pre
""")

def ffn_pre(a, role):
    P = w_params(role); nb, pitch, PC, SLOT, L = P["nb"], P["pitch"], P["PC"], P["SLOT"], P["L"]
    a(f"L_{role}_pre:")
    srd(a, sB, 16, SZ_W1); srd_off(a, sO, 20, WS_HF, SZ_HF)
    a(f"  s_cmp_ge_u32 s{sW}, 4\n  s_cbranch_scc0 L_{role}_pre_c")
    a(f"  s_mul_i32 s{sT0}, s{sPW}, {64*L}\n  s_lshl_b32 s{sT1}, s{sG0}, 7")
    for ii in range(L):
        t = vT+1
        a(f"  v_add_u32 v{t}, s{sT0}, v{vLane}")
        if ii: a(f"  v_add_u32 v{t}, {64*ii}, v{t}")
        if role == "W":
            a(f"  v_mul_u32_u24 v{t+1}, 1639, v{t}\n  v_lshrrev_b32 v{t+1}, 16, v{t+1}")
        else:
            a(f"  v_lshrrev_b32 v{t+1}, 5, v{t}")
        a(f"  v_mul_u32_u24 v{t+2}, {PC}, v{t+1}\n  v_sub_u32 v{t+2}, v{t}, v{t+2}")
        if role == "W":
            a(f"  v_bfe_u32 v{t+3}, v{t+1}, 1, 1\n  v_bfe_u32 v{t+4}, v{t+1}, 3, 1\n  v_lshl_or_b32 v{t+3}, v{t+4}, 1, v{t+3}")
        else:
            a(f"  v_and_b32 v{t+3}, 3, v{t+1}\n  v_bfe_u32 v{t+4}, v{t+1}, 3, 1\n  v_lshl_or_b32 v{t+3}, v{t+4}, 2, v{t+3}")
        a(f"""  v_lshrrev_b32 v{t+4}, 1, v{t+2}
  v_xor_b32 v{t+4}, v{t+4}, v{t+3}
  v_lshlrev_b32 v{t+4}, 5, v{t+4}
  v_and_b32 v{t+2}, 1, v{t+2}
  v_lshl_add_u32 v{t+4}, v{t+2}, 4, v{t+4}
  v_mul_u32_u24 v{t+1}, 3456, v{t+1}
  v_add3_u32 v{vAD+ii}, v{t+1}, v{t+4}, s{sT1}""")
    a(f"  s_mul_i32 s{sM}, s{sPW}, {L*1024}\n  s_add_u32 s{sM}, s{sM}, {RING}\n  s_mov_b32 s{sK}, 0")
    for st in range(4):
        for ii in range(L):
            a(f"  s_add_u32 m0, s{sM}, {st*SLOT + ii*1024}\n  s_nop 0\n  buffer_load_dwordx4 v{vAD+ii}, {sr(sB)}, s{sK} offen lds")
        a(f"  s_add_u32 s{sK}, s{sK}, 110592")
    a(f"  s_waitcnt vmcnt({4*L})\n  s_branch L_ln")
    a(f"L_{role}_pre_c:")
    for qp in range(4):
        a(f"""  v_add_u32 v{vT+1}, {4*qp}, v{vG}
  v_xor_b32 v{vT+1}, v{vT+1}, v{vN}
  v_lshlrev_b32 v{vT+1}, 4, v{vT+1}
  v_mul_u32_u24 v{vT+2}, 1280, v{vN}
  v_add_u32 v{vAD+qp}, v{vT+1}, v{vT+2}""")
    a(f"""  v_bfe_u32 v{vT+1}, v{vLane}, 2, 2        ; r4
  v_and_b32 v{vT+2}, 3, v{vLane}           ; cc
  v_lshl_add_u32 v{vT+3}, v{vG}, 3, v{vT+1}  ; row
  v_mul_u32_u24 v{vT+3}, {pitch}, v{vT+3}
  v_lshl_add_u32 v{vT+3}, v{vT+2}, 3, v{vT+3}
  v_add_u32 v{vT+3}, {RING}, v{vT+3}
  v_and_b32 v{vT+4}, 1, v{vG}""")
    if role == "W":
        a(f"  v_lshrrev_b32 v{vT+5}, 1, v{vT+1}\n  v_lshl_or_b32 v{vT+4}, v{vT+4}, 1, v{vT+5}")
    else:
        a(f"  v_lshl_or_b32 v{vT+4}, v{vT+4}, 2, v{vT+1}")
    a(f"  s_mul_i32 s{sT0}, s{sW}, {nb}")
    for b in range(nb):
        a(f"""  s_add_u32 s{sT1}, s{sT0}, {b}
  v_xor_b32 v{vT+5}, s{sT1}, v{vT+4}
  v_lshl_add_u32 v{vAD+4+b}, v{vT+5}, 5, v{vT+3}""")
    for i in range(16*nb): a(f"  v_mov_b32 v{ACC+i}, 0")
    a("  s_waitcnt vmcnt(0)\n  s_branch L_ln")

def f_pre(a):
    a("L_F_pre:")
    a(f"""  s_cmp_ge_u32 s{sPW}, 2
  s_cselect_b32 s{sB}, s14, s12
  s_cselect_b32 s{sB+1}, s15, s13
  s_mov_b32 s{sB+2}, {SZ_WD}
  s_mov_b32 s{sB+3}, 0x00020000""")
    srd_off(a, sO, 20, WS_Y1, SZ_Y1)
    a(f"""  s_lshl_b32 s{sQ}, s{sJ}, 1
  s_add_u32 s{sQ}, s{sQ}, s{sP}          ; fi = 2j+p
  s_cmp_eq_u32 s{sP}, 0
  s_cselect_b32 s{sSgn}, 1.0, -1.0
  s_cmp_ge_u32 s{sW}, 4
  s_cbranch_scc0 L_F_pre_c""")
    srd(a, sW2, 18, SZ_W2); srd_off(a, sW2F, 20, WS_W2F, SZ_W2F)
    a(f"""  s_sub_u32 s{sT0}, 2, s{sP}             ; e0
  s_and_b32 s{sT1}, s{sPW}, 1
  s_lshl_b32 s{sT1}, s{sT1}, 4
  s_add_u32 s{sT0}, s{sT0}, s{sT1}
  v_lshl_add_u32 v{vT+1}, v{vR8}, 1, s{sT0}
  v_mul_u32_u24 v{vT+1}, 1280, v{vT+1}
  s_lshl_b32 s{sT1}, s{sPW}, 2
  v_add_u32 v{vT+2}, s{sT1}, v{vG}
  v_and_b32 v{vT+2}, 7, v{vT+2}
  v_xor_b32 v{vT+2}, v{vT+2}, v{vC8}
  v_lshl_add_u32 v{vAD}, v{vT+2}, 4, v{vT+1}
  s_lshl_b32 s{sM}, s{sPW}, 10
  s_add_u32 s{sM}, s{sM}, 40960""")
    for kc in range(2):
        f_issue_chunk(a, kc)
    a(f"  s_mul_i32 s{sT0}, s{sPW}, 640")
    for ii in range(10):
        t = vT+1
        a(f"""  v_add_u32 v{t}, s{sT0}, v{vLane}
  v_add_u32 v{t}, {64*ii}, v{t}
  v_mul_u32_u24 v{t+1}, 1639, v{t}
  v_lshrrev_b32 v{t+1}, 17, v{t+1}
  v_mul_u32_u24 v{t+2}, 80, v{t+1}
  v_sub_u32 v{t+2}, v{t}, v{t+2}
  v_lshrrev_b32 v{t+3}, 1, v{t+2}
  v_and_b32 v{t+4}, 7, v{t+1}
  v_xor_b32 v{t+3}, v{t+3}, v{t+4}
  v_lshlrev_b32 v{t+3}, 5, v{t+3}
  v_and_b32 v{t+2}, 1, v{t+2}
  v_lshl_add_u32 v{t+3}, v{t+2}, 4, v{t+3}
  v_mul_u32_u24 v{t+1}, 1280, v{t+1}
  v_add_u32 v{vAD+1+ii}, v{t+1}, v{t+3}""")
    a(f"""  s_mul_i32 s{sT0}, s{sQ}, {32*1280}
  s_cmp_lt_u32 s{sQ}, 54
  s_cselect_b32 s{sT0}, s{sT0}, {OOB}
  s_mul_i32 s{sT1}, s{sPW}, 10240
  s_add_u32 s{sT1}, s{sT1}, 122880""")
    for ii in range(10):
        a(f"  s_add_u32 m0, s{sT1}, {ii*1024}\n  s_nop 0\n  buffer_load_dwordx4 v{vAD+1+ii}, {sr(sW2)}, s{sT0} offen lds")
    a("  s_waitcnt vmcnt(30)\n  s_branch L_ln")
    a("L_F_pre_c:")
    srd(a, sRE, 8, SZ_WS); srd(a, sIM, 10, SZ_WS)
    a(f"  s_and_b32 s{sT0}, s{sW}, 1\n  s_lshr_b32 s{sT1}, s{sW}, 1")
    for ql in range(2):
        a(f"""  v_add_u32 v{vT+1}, {4*ql}, v{vG}
  v_lshrrev_b32 v{vT+2}, 1, v{vN}
  v_xor_b32 v{vT+1}, v{vT+1}, v{vT+2}
  v_lshlrev_b32 v{vT+1}, 4, v{vT+1}
  v_mul_u32_u24 v{vT+2}, 640, v{vN}
  s_mul_i32 s{sT2}, s{sT0}, {32*640}
  v_add3_u32 v{F_AD+ql}, v{vT+1}, v{vT+2}, s{sT2}
  v_lshlrev_b32 v{vT+2}, 7, v{vN}
  s_mul_i32 s{sT2}, s{sT1}, 20480
  s_add_u32 s{sT2}, s{sT2}, 40960
  v_add3_u32 v{F_AD+2+ql}, v{vT+1}, v{vT+2}, s{sT2}""")
    a(f"""  s_mul_i32 s{sT2}, s{sT0}, 20480
  s_mul_i32 s{sT3}, s{sT1}, 320
  s_add_u32 s{sT2}, s{sT2}, s{sT3}
  s_add_u32 s{sT2}, s{sT2}, 81920
  v_mul_u32_u24 v{vT+1}, 2560, v{vG}
  v_lshl_add_u32 v{vT+1}, v{vN}, 2, v{vT+1}
  v_add_u32 v{F_AD+4}, s{sT2}, v{vT+1}""")
    a("  s_waitcnt vmcnt(0)\n  s_branch L_ln")


def f_issue_chunk(a, kc):
    for U in range(10):
        a(f"  s_add_u32 m0, s{sM}, {(kc%2)*40960 + U*4096}")
        a(f"  s_mov_b32 s{sK}, {U*40960 + 128*kc}")
        a(f"  buffer_load_dwordx4 v{vAD}, {sr(sB)}, s{sK} offen lds")

def ln_common(a):
    a("L_ln:")
    for d in range(40):
        u0 = UNP + 2*d
        a(f"  v_lshlrev_b32 v{u0}, 16, v{RAW+d}\n  v_and_b32 v{u0+1}, 0xffff0000, v{RAW+d}")
        if d >= 1:
            dd = d-1; p = UNP + 2*dd; k = dd % 4
            if dd < 4:
                a(f"  v_pk_add_f32 {vr(SUM+2*k,2)}, {vr(p,2)}, 0\n  v_pk_mul_f32 {vr(SQ+2*k,2)}, {vr(p,2)}, {vr(p,2)}")
            else:
                a(f"  v_pk_add_f32 {vr(SUM+2*k,2)}, {vr(SUM+2*k,2)}, {vr(p,2)}\n  v_pk_fma_f32 {vr(SQ+2*k,2)}, {vr(p,2)}, {vr(p,2)}, {vr(SQ+2*k,2)}")
    dd = 39; p = UNP + 2*dd; k = dd % 4
    a(f"  v_pk_add_f32 {vr(SUM+2*k,2)}, {vr(SUM+2*k,2)}, {vr(p,2)}\n  v_pk_fma_f32 {vr(SQ+2*k,2)}, {vr(p,2)}, {vr(p,2)}, {vr(SQ+2*k,2)}")
    a(f"""  v_pk_add_f32 {vr(SUM,2)}, {vr(SUM,2)}, {vr(SUM+2,2)}
  v_pk_add_f32 {vr(SQ,2)}, {vr(SQ,2)}, {vr(SQ+2,2)}
  v_pk_add_f32 {vr(SUM+4,2)}, {vr(SUM+4,2)}, {vr(SUM+6,2)}
  v_pk_add_f32 {vr(SQ+4,2)}, {vr(SQ+4,2)}, {vr(SQ+6,2)}
  v_pk_add_f32 {vr(SUM,2)}, {vr(SUM,2)}, {vr(SUM+4,2)}
  v_pk_add_f32 {vr(SQ,2)}, {vr(SQ,2)}, {vr(SQ+4,2)}
  v_add_f32 v{SUM}, v{SUM}, v{SUM+1}
  v_add_f32 v{SQ}, v{SQ}, v{SQ+1}
  s_nop 0""")
    for ctl in ("quad_perm:[1,0,3,2]", "quad_perm:[2,3,0,1]", "row_half_mirror"):
        a(f"  v_add_f32_dpp v{SUM}, v{SUM}, v{SUM} {ctl} row_mask:0xf bank_mask:0xf")
        a(f"  v_add_f32_dpp v{SQ}, v{SQ}, v{SQ} {ctl} row_mask:0xf bank_mask:0xf")
        a("  s_nop 0")
    a(f"""  v_mul_f32 v{vMean}, s{sC640}, v{SUM}        ; mean
  v_mul_f32 v{SQ}, s{sC640}, v{SQ}            ; E[x^2]
  v_fma_f32 v{SQ}, -v{vMean}, v{vMean}, v{SQ}   ; var
  v_max_f32 v{SQ}, 0, v{SQ}
  v_cvt_pk_bf16_f32 v{vMean}, v{vMean}, v{vMean}
  v_cvt_pk_bf16_f32 v{SQ}, v{SQ}, v{SQ}
  v_and_b32 v{vMean}, 0xffff0000, v{vMean}
  v_and_b32 v{SQ}, 0xffff0000, v{SQ}
  v_add_f32 v{SQ}, s{sEps}, v{SQ}
  v_cvt_pk_bf16_f32 v{SQ}, v{SQ}, v{SQ}
  v_and_b32 v{SQ}, 0xffff0000, v{SQ}
  v_sqrt_f32 v{SQ}, v{SQ}
  s_nop 0
  v_cvt_pk_bf16_f32 v{SQ}, v{SQ}, v{SQ}
  v_and_b32 v{SQ}, 0xffff0000, v{SQ}
  v_rcp_f32 v{vRs}, v{SQ}
  s_nop 0
  v_mul_f32 v{vC0}, v{vMean}, v{vRs}
  v_sub_f32 v{vC0}, 0, v{vC0}                 ; -m*r
  s_cmp_eq_u32 s{sRole}, 2
  s_cbranch_scc1 L_ln_F""")
    a(f"""  v_and_b32 v{vT+1}, 15, v{vT}
  v_xor_b32 v{vT+2}, v{vC8}, v{vT+1}
  v_add_u32 v{vT+3}, 8, v{vC8}
  v_xor_b32 v{vT+3}, v{vT+3}, v{vT+1}
  v_mul_u32_u24 v{vT+1}, 1280, v{vT}
  v_lshl_add_u32 v{vXo}, v{vT+2}, 4, v{vT+1}
  v_lshl_add_u32 v{vXw1}, v{vT+3}, 4, v{vT+1}""")
    for u in range(10):
        for dq in range(4):
            d = 4*u + dq; p = UNP + 2*d
            a(f"  v_pk_fma_f32 {vr(p,2)}, {vr(p,2)}, {vr(vRs,2)}, {vr(vC0,2)} op_sel_hi:[1,0,0]")
        for dq in range(4):
            d = 4*u + dq; p = UNP + 2*d
            a(f"  v_cvt_pk_bf16_f32 v{RAW+d}, v{p}, v{p+1}")
        a(f"  ds_write_b128 v{vXo if u%2==0 else vXw1}, {vr(RAW+4*u)} offset:{256*(u>>1)}")
    a(f"""  s_cmp_eq_u32 s{sRole}, 1
  s_cbranch_scc1 L_N_main
  s_branch L_W_main""")
    a("L_ln_F:")
    a(f"""  v_mov_b32 v{vSg}, s{sSgn}
  v_add_f32 v{vT+1}, 1.0, v{vSg}
  v_mul_f32 v{vC0}, v{vC0}, v{vT+1}
  v_bfe_u32 v{vT+1}, v{vT}, 1, 3
  v_xor_b32 v{vT+1}, v{vT+1}, v{vC8}
  v_mul_u32_u24 v{vT+2}, 640, v{vT}
  v_lshl_add_u32 v{vXo}, v{vT+1}, 4, v{vT+2}""")
    for u in range(5):
        for dq in range(4):
            d = 4*u + dq; p = UNP + 2*d; p2 = UNP + 2*(d+20)
            a(f"  v_pk_fma_f32 {vr(p,2)}, {vr(p2,2)}, {vr(vSg,2)}, {vr(p,2)} op_sel_hi:[1,0,1]")
        for dq in range(4):
            d = 4*u + dq; p = UNP + 2*d
            a(f"  v_pk_fma_f32 {vr(p,2)}, {vr(p,2)}, {vr(vRs,2)}, {vr(vC0,2)} op_sel_hi:[1,0,0]")
        for dq in range(4):
            d = 4*u + dq; p = UNP + 2*d
            a(f"  v_cvt_pk_bf16_f32 v{RAW+d}, v{p}, v{p+1}")
        a(f"  ds_write_b128 v{vXo}, {vr(RAW+4*u)} offset:{128*u}")
    a("  s_branch L_F_main")

def ffn_main(a, role):
    P = w_params(role); nb, pitch, PC, SLOT, L = P["nb"], P["pitch"], P["PC"], P["SLOT"], P["L"]
    a(f"L_{role}_main:")
    a(f"  s_cmp_ge_u32 s{sW}, 4\n  s_cbranch_scc0 L_{role}_cons")
    a(f"  s_waitcnt vmcnt({3*L}) lgkmcnt(0)\n  s_barrier")
    a(f"  s_mov_b32 s{sCnt}, 16\n  s_mov_b32 s{sT0}, 0")
    a(f"L_{role}_ploop:")
    a(f"  s_waitcnt vmcnt({2*L})\n  s_barrier")
    a(f"  s_add_u32 s{sT1}, s{sM}, s{sT0}")
    for ii in range(L):
        a(f"  s_add_u32 m0, s{sT1}, {ii*1024}\n  s_nop 0\n  buffer_load_dwordx4 v{vAD+ii}, {sr(sB)}, s{sK} offen lds")
    a(f"""  s_add_u32 s{sK}, s{sK}, 110592
  s_add_u32 s{sT0}, s{sT0}, {SLOT}
  s_cmp_eq_u32 s{sT0}, {4*SLOT}
  s_cselect_b32 s{sT0}, 0, s{sT0}
  s_sub_u32 s{sCnt}, s{sCnt}, 1
  s_cmp_lg_u32 s{sCnt}, 0
  s_cbranch_scc1 L_{role}_ploop
  s_waitcnt vmcnt({2*L})
  s_barrier
  s_waitcnt vmcnt({L})
  s_barrier
  s_waitcnt vmcnt(0)
  s_barrier
  s_barrier
  s_endpgm""")
    a(f"L_{role}_cons:")
    FB = [16, 16 + 16 + 4*nb]
    def X(k, rt): return FB[k] + 4*rt
    def Wf(k, b): return FB[k] + 16 + 4*b
    def acc(b, rt): return ACC + (b*4 + rt)*4
    def reads(t):
        k = t % 2; qp = t % 4; xo = 256 if t == 4 else 0
        r = []
        for rt in range(4):
            r.append(f"  ds_read_b128 {vr(X(k,rt))}, v{vAD+qp} offset:{rt*20480 + xo}")
        for b in range(nb):
            so = qp*SLOT
            r.append(f"  ds_read_b64_tr_b16 {vr(Wf(k,b),2)}, v{vAD+4+b} offset:{so}")
            r.append(f"  ds_read_b64_tr_b16 {vr(Wf(k,b)+2,2)}, v{vAD+4+b} offset:{so + 4*pitch}")
        return r
    a("  s_waitcnt lgkmcnt(0)\n  s_barrier")
    for l in reads(0): a(l)
    a(f"  s_mov_b32 s{sCnt}, 5\n  s_waitcnt lgkmcnt(0)")
    a(f"L_{role}_cloop:")
    for t in range(4):
        k = t % 2
        a("  s_barrier")
        rd = reads(t+1)
        mm = [mfma(vr(acc(b,rt)), vr(Wf(k,b)), vr(X(k,rt)), vr(acc(b,rt))) for b in range(nb) for rt in range(4)]
        ri = 0
        for i, m in enumerate(mm):
            a(m)
            if ri < len(rd): a(rd[ri]); ri += 1
        while ri < len(rd): a(rd[ri]); ri += 1
        if t == 3:
            for qp in range(4): a(f"  v_add_u32 v{vAD+qp}, 0x100, v{vAD+qp}")
        a("  s_waitcnt lgkmcnt(0)")
    a(f"  s_sub_u32 s{sCnt}, s{sCnt}, 1\n  s_cmp_lg_u32 s{sCnt}, 0\n  s_cbranch_scc1 L_{role}_cloop")
    a(f"""  v_lshlrev_b32 v{vT}, 4, v{vLane}
  v_add_u32 v{vT+1}, 8, v{vT}
  s_mul_i32 s{sT0}, s{sJ}, 54
  s_lshl_b32 s{sT1}, s{sG0}, 1
  s_add_u32 s{sT0}, s{sT0}, s{sT1}         ; j*54 + 2*G0
  s_nop 4""")
    def pack(dst, b, rt):
        s = acc(b, rt)
        a(f"  v_cvt_pk_bf16_f32 v{dst}, v{s}, v{s+1}\n  v_cvt_pk_bf16_f32 v{dst+1}, v{s+2}, v{s+3}")
        a(f"  v_pk_max_i16 v{dst}, v{dst}, 0\n  v_pk_max_i16 v{dst+1}, v{dst+1}, 0")
    tmp = [16]
    def nxt(n):
        r = tmp[0]; tmp[0] += n
        return r
    def store_pair(b, qloc):
        a(f"  s_add_u32 s{sT2}, s{sT1}, {qloc}\n  s_lshl_b32 s{sT2}, s{sT2}, 12")
        for rt in range(4):
            d = nxt(4)
            pack(d, b, rt); pack(d+2, b+1, rt)
            a(f"  buffer_store_dwordx4 {vr(d)}, v{vT}, {sr(sO)}, s{sT2} offen offset:{1024*rt} sc1")
    def store_single(b, qloc, half):
        a(f"  s_add_u32 s{sT2}, s{sT1}, {qloc}\n  s_lshl_b32 s{sT2}, s{sT2}, 12")
        for rt in range(4):
            d = nxt(2)
            pack(d, b, rt)
            a(f"  buffer_store_dwordx2 {vr(d,2)}, v{vT+half}, {sr(sO)}, s{sT2} offen offset:{1024*rt} sc1")
    if role == "N":
        a(f"  s_lshl_b32 s{sT1}, s{sW}, 1\n  s_add_u32 s{sT1}, s{sT1}, s{sT0}")
        store_pair(0, 0); store_pair(2, 1)
    else:
        a(f"  s_lshr_b32 s{sT1}, s{sW}, 1\n  s_mul_i32 s{sT1}, s{sT1}, 5\n  s_add_u32 s{sT1}, s{sT1}, s{sT0}")
        a(f"  s_bitcmp1_b32 s{sW}, 0\n  s_cbranch_scc1 L_W_odd")
        store_pair(0, 0); store_pair(2, 1); store_single(4, 2, 0)
        a("  s_endpgm\nL_W_odd:")
        tmp[0] = 16
        store_single(0, 2, 1); store_pair(1, 3); store_pair(3, 4)
    a("  s_endpgm")

def f_main(a):
    a("L_F_main:")
    a(f"  s_cmp_ge_u32 s{sW}, 4\n  s_cbranch_scc0 L_F_cons")
    a("  s_waitcnt vmcnt(20) lgkmcnt(0)\n  s_barrier")
    a("  s_waitcnt vmcnt(10)\n  s_barrier")
    f_issue_chunk(a, 2)
    a("  s_waitcnt vmcnt(0)\n  s_barrier")
    f_issue_chunk(a, 3)
    a(f"""  v_bfe_u32 v{vT+1}, v{vLane}, 2, 2          ; r4
  v_and_b32 v{vT+2}, 3, v{vLane}
  v_lshl_add_u32 v{vT+3}, v{vG}, 2, v{vT+1}    ; row = 4g + r4
  v_and_b32 v{vT+4}, 7, v{vT+3}                ; sigma
  v_mul_u32_u24 v{vT+3}, 1280, v{vT+3}
  v_lshl_add_u32 v{vT+3}, v{vT+2}, 3, v{vT+3}
  v_add_u32 v{vT+3}, 122880, v{vT+3}
  s_mul_i32 s{sT0}, s{sPW}, 10""")
    for i in range(10):
        a(f"""  s_add_u32 s{sT1}, s{sT0}, {i}
  v_xor_b32 v{vT+5}, s{sT1}, v{vT+4}
  v_lshl_add_u32 v{vT+5}, v{vT+5}, 5, v{vT+3}
  ds_read_b64_tr_b16 {vr(16+4*i,2)}, v{vT+5}
  ds_read_b64_tr_b16 {vr(16+4*i+2,2)}, v{vT+5} offset:{16*1280}""")
        if i == 6: a("  s_waitcnt lgkmcnt(0)")
    a(f"""  v_lshlrev_b32 v{vT}, 4, v{vLane}
  s_lshl_b32 s{sT0}, s{sPW}, 1
  s_mul_i32 s{sT0}, s{sT0}, 54
  s_add_u32 s{sT0}, s{sT0}, s{sQ}
  s_mul_i32 s{sT0}, s{sT0}, 5120
  s_cmp_lt_u32 s{sQ}, 54
  s_cselect_b32 s{sT0}, s{sT0}, {OOB}
  s_waitcnt lgkmcnt(0)""")
    for i in range(10):
        a(f"  s_add_u32 s{sT1}, s{sT0}, {(i//5)*54*5120 + (i%5)*1024}")
        a(f"  buffer_store_dwordx4 {vr(16+4*i)}, v{vT}, {sr(sW2F)}, s{sT1} offen sc1")
    a("  s_waitcnt vmcnt(10)\n  s_barrier")
    f_issue_chunk(a, 4)
    a("  s_waitcnt vmcnt(0)\n  s_barrier")
    a("  s_branch L_F_copy")
    a("L_F_cons:")
    AB = [16, 32]; BB = [48, 64]
    CC, SS, NN = 80, 88, 96
    FA = [104, 112]; YY = [120, 136]
    def acc(u, blk, rtl): return ACC + ((u*2 + blk)*2 + rtl)*4
    a(f"  v_mul_u32_u24 v{vT+1}, 262144, v{vN}\n  v_lshl_add_u32 v{vT+1}, v{vG}, 3, v{vT+1}\n  s_mov_b32 s{sT0}, {16*262144}")
    for h in range(2):
        so = "0" if h == 0 else f"s{sT0}"
        a(f"  buffer_load_dwordx2 {vr(CC+4*h,2)}, v{vT+1}, {sr(sRE)}, {so} offen")
        a(f"  buffer_load_dwordx2 {vr(CC+4*h+2,2)}, v{vT+1}, {sr(sRE)}, {so} offen offset:32")
        a(f"  buffer_load_dwordx2 {vr(SS+4*h,2)}, v{vT+1}, {sr(sIM)}, {so} offen")
        a(f"  buffer_load_dwordx2 {vr(SS+4*h+2,2)}, v{vT+1}, {sr(sIM)}, {so} offen offset:32")
    def reads(s):
        kc, u = divmod(s, 5); r = []
        if u == 0:
            for rtl in range(2):
                for ql in range(2):
                    r.append(f"  ds_read_b128 {vr(AB[kc%2] + 4*(2*rtl+ql))}, v{F_AD+ql} offset:{rtl*10240 + kc*128}")
        for blk in range(2):
            for ql in range(2):
                r.append(f"  ds_read_b128 {vr(BB[s%2] + 4*(2*blk+ql))}, v{F_AD+2+ql} offset:{(kc%2)*40960 + u*4096 + blk*2048}")
        return r
    a("  s_waitcnt lgkmcnt(0)\n  s_barrier")
    for l in reads(0): a(l)
    a("  s_waitcnt lgkmcnt(0)")
    for s in range(25):
        kc, u = divmod(s, 5)
        rd = []
        if s+1 < 25:
            if (s+1) % 5 == 0: a("  s_barrier")
            rd = reads(s+1)
        mm = []
        for ql in range(2):
            for blk in range(2):
                for rtl in range(2):
                    c = "0" if (kc == 0 and ql == 0) else vr(acc(u,blk,rtl))
                    mm.append(mfma(vr(acc(u,blk,rtl)), vr(AB[kc%2] + 4*(2*rtl+ql)), vr(BB[s%2] + 4*(2*blk+ql)), c))
        ri = 0
        for m in mm:
            a(m)
            if ri < len(rd): a(rd[ri]); ri += 1
        while ri < len(rd): a(rd[ri]); ri += 1
        a("  s_waitcnt lgkmcnt(0)")
    a("  s_waitcnt vmcnt(0)")
    for i in range(8): a(f"  v_xor_b32 v{NN+i}, 0x80008000, v{SS+i}")
    def cvt(u):
        f = FA[u%2]
        for blk in range(2):
            for rtl in range(2):
                s0 = acc(u, blk, rtl); d = f + 4*blk + 2*rtl
                a(f"  v_cvt_pk_bf16_f32 v{d}, v{s0}, v{s0+1}\n  v_cvt_pk_bf16_f32 v{d+1}, v{s0+2}, v{s0+3}")
    def f32(u):
        f = FA[u%2]; y = YY[u%2]
        for h in range(2):
            a(mfma(vr(y+8*h),   vr(CC+4*h), vr(f),   "0"))
            a(mfma(vr(y+8*h+4), vr(SS+4*h), vr(f),   "0"))
        for h in range(2):
            a(mfma(vr(y+8*h),   vr(NN+4*h), vr(f+4), vr(y+8*h)))
            a(mfma(vr(y+8*h+4), vr(CC+4*h), vr(f+4), vr(y+8*h+4)))
    def emit_y(u):
        y = YY[u%2]
        for h in range(2):
            for r in range(4):
                a(f"  v_cvt_pk_bf16_f32 v{y+8*h+r}, v{y+8*h+r}, v{y+8*h+4+r}")
        for h in range(2):
            for r in range(4):
                a(f"  ds_write_b32 v{F_AD+4}, v{y+8*h+r} offset:{(16*h+r)*640 + 64*u}")
    a("  s_nop 4")
    cvt(0); a("  s_nop 1"); f32(0)
    for u in range(1, 5):
        cvt(u); a("  s_nop 1"); f32(u)
        emit_y(u-1)
    a("  s_nop 7"); emit_y(4)
    a("L_F_copy:")
    a("  s_waitcnt lgkmcnt(0)\n  s_barrier")
    a(f"""  v_lshlrev_b32 v{vT}, 4, v{vLane}
  s_mul_i32 s{sT0}, s{sW}, 5120
  s_add_u32 s{sT0}, s{sT0}, 81920
  v_add_u32 v{vT+1}, s{sT0}, v{vT}
  v_add_u32 v{vT+2}, 0x1000, v{vT}""")
    for i in range(5): a(f"  ds_read_b128 {vr(16+4*i)}, v{vT+1} offset:{1024*i}")
    a(f"""  s_lshr_b32 s{sT0}, s{sW}, 2
  s_lshl_b32 s{sT0}, s{sT0}, 5
  s_add_u32 s{sT0}, s{sT0}, s{sJ}
  s_mul_i32 s{sT0}, s{sT0}, 20480
  s_mul_i32 s{sT1}, s{sP}, {64*32*640}
  s_add_u32 s{sT0}, s{sT0}, s{sT1}
  s_mul_i32 s{sT1}, s{sPW}, 5120
  s_add_u32 s{sT0}, s{sT0}, s{sT1}""")
    for i in range(5):
        a(f"  s_waitcnt lgkmcnt({4-i})")
        if i < 4: a(f"  buffer_store_dwordx4 {vr(16+4*i)}, v{vT}, {sr(sO)}, s{sT0} offen offset:{1024*i} sc1")
        else:     a(f"  buffer_store_dwordx4 {vr(16+4*i)}, v{vT+2}, {sr(sO)}, s{sT0} offen sc1")
    a("  s_endpgm")

def gen_k1(a, name="k1_kernel"):
    common_entry(a, name)
    ffn_pre(a, "W"); ffn_pre(a, "N"); f_pre(a)
    ln_common(a)
    ffn_main(a, "W"); ffn_main(a, "N"); f_main(a)
    a(f"L_{name}_end:\n  s_endpgm")
    return dict(vgpr=256)
```

```python
from gen_common import *

def gen_k2(a, name="k2_kernel", stamps=False):
    sX, sRE, sIM, sOUT, sHF, sW2, sY1 = 16, 20, 24, 28, 32, 36, 40
    sW, sJ, sC, sTM, sSGN = 44, 45, 46, 47, 48
    sH, sWo = 49, 50
    sT0, sT1, sT2, sT3 = 51, 52, 53, 54
    sP0, sP1 = 55, 56
    sY = 57
    sG = 61
    sO = 65
    sMir = 66
    vLane, vN, vG_, vL16, vL16b = 1, 2, 3, 4, 5
    vT = 6
    vYa = 10
    vGa, vO = 15, 160
    BUF = [16 + 36*k for k in range(4)]
    vX = 162
    vGr = 172
    vR = 16
    def A(k, eb): return BUF[k] + 4*eb
    def B(k, rt): return BUF[k] + 20 + 4*rt
    def acc(eb, rt): return (eb*4 + rt)*4

    a(kernel_header(name))
    a(f"""
  s_cmp_ge_u32 s2, 256
  s_cbranch_scc1 L_{name}_end
  s_load_dwordx2 s[4:5], s[0:1], 0
  s_load_dwordx4 s[8:11], s[0:1], 8
  s_load_dwordx2 s[12:13], s[0:1], 64
  s_load_dwordx2 s[14:15], s[0:1], 80
  v_lshrrev_b32 v{vT}, 6, v0
  v_and_b32 v{vLane}, 63, v0
  v_readfirstlane_b32 s{sW}, v{vT}
  v_and_b32 v{vN}, 15, v{vLane}
  v_lshrrev_b32 v{vG_}, 4, v{vLane}
  v_lshlrev_b32 v{vL16}, 4, v{vLane}
  v_add_u32 v{vL16b}, 0x1000, v{vL16}
  s_and_b32 s{sT0}, s2, 7
  s_lshr_b32 s{sT1}, s2, 3          ; m
  s_lshr_b32 s{sT2}, s{sT0}, 1      ; r
  s_and_b32 s{sT0}, s{sT0}, 1       ; cc
  s_lshr_b32 s{sT3}, s{sT1}, 3      ; jl>>1
  s_lshl_b32 s{sT2}, s{sT2}, 2
  s_add_u32 s{sT2}, s{sT2}, s{sT3}  ; pi
  s_sub_u32 s{sJ}, 32, s{sT2}
  s_cmp_eq_u32 s{sT2}, 0
  s_cselect_b32 s{sJ}, 16, s{sJ}
  s_bitcmp1_b32 s{sT1}, 2           ; jl & 1
  s_cselect_b32 s{sJ}, s{sJ}, s{sT2}
  s_lshl_b32 s{sT0}, s{sT0}, 1
  s_bfe_u32 s{sT3}, s{sT1}, 0x10001 ; (m>>1)&1
  s_add_u32 s{sT0}, s{sT0}, s{sT3}  ; base
  s_sub_u32 s{sC}, 7, s{sT0}
  s_and_b32 s{sMir}, s{sT1}, 1
  s_cmp_eq_u32 s{sMir}, 1
  s_cselect_b32 s{sC}, s{sC}, s{sT0}
  s_sub_u32 s{sT3}, 32, s{sJ}
  s_and_b32 s{sT3}, s{sT3}, 31
  s_cselect_b32 s{sTM}, s{sJ}, s{sJ}
  s_cmp_eq_u32 s{sMir}, 1
  s_cselect_b32 s{sTM}, s{sT3}, s{sJ}
  s_cselect_b32 s{sSGN}, 0, 0x80008000
  s_mov_b32 s{sP0}, 0x05040100
  s_mov_b32 s{sP1}, 0x07060302
""")
    a(f"  s_mul_i32 s{sT0}, s{sC}, 80")
    for eb in range(5):
        a(f"""  v_add_u32 v{vT}, s{sT0}, v{vN}
  v_add_u32 v{vT}, {16*eb}, v{vT}            ; e
  v_sub_u32 v{vT+1}, 640, v{vT}
  s_cmp_eq_u32 s{sMir}, 1
  s_cselect_b64 vcc, -1, 0
  v_cndmask_b32 v{vT}, v{vT}, v{vT+1}, vcc   ; e'
  v_and_b32 v{vT+1}, 1, v{vT}                ; p
  v_lshrrev_b32 v{vT+2}, 1, v{vT}
  v_add_u32 v{vT+2}, v{vT+2}, v{vT+1}
  v_add_u32 v{vT+2}, -1, v{vT+2}             ; idx
  v_lshlrev_b32 v{vT+2}, 2, v{vT+2}
  v_mul_u32_u24 v{vT+1}, {64*32*640}, v{vT+1}
  v_add_u32 v{vT+2}, v{vT+2}, v{vT+1}
  v_mul_u32_u24 v{vT+1}, 81920, v{vG_}
  v_add_u32 v{vT+2}, v{vT+2}, v{vT+1}
  v_mov_b32 v{vT+1}, {OOB}
  v_cmp_eq_u32 vcc, 0, v{vT}
  s_nop 1
  v_cndmask_b32 v{vYa+eb}, v{vT+2}, v{vT+1}, vcc""")
    a(f"""
  v_mul_u32_u24 v{vGa}, 262144, v{vN}
  v_lshlrev_b32 v{vT}, 3, v{vG_}
  v_add_u32 v{vGa}, v{vGa}, v{vT}
  v_mul_u32_u24 v{vO}, 81920, v{vN}
  v_add_u32 v{vO}, v{vO}, v{vT}
  s_lshl_b32 s{sT0}, s{sW}, 4
  s_mul_i32 s{sT0}, s{sT0}, 20480
  s_mul_i32 s{sT1}, s{sTM}, 640
  s_add_u32 s{sY}, s{sT0}, s{sT1}
  s_add_u32 s{sY+1}, s{sY}, 20480
  s_add_u32 s{sY+2}, s{sY}, 40960
  s_add_u32 s{sY+3}, s{sY}, 61440
  s_lshl_b32 s{sT0}, s{sJ}, 12
  s_lshl_b32 s{sT1}, s{sW}, 5
  s_add_u32 s{sG}, s{sT0}, s{sT1}
  s_add_u32 s{sG+1}, s{sG}, {1024*4096}
  s_add_u32 s{sG+2}, s{sG}, {32*4096}
  s_add_u32 s{sG+3}, s{sG+1}, {32*4096}
  s_lshr_b32 s{sT0}, s{sW}, 1
  s_lshl_b32 s{sT0}, s{sT0}, 5
  s_and_b32 s{sT1}, s{sW}, 1
  s_lshl_b32 s{sT1}, s{sT1}, 10
  s_add_u32 s{sT0}, s{sT0}, s{sT1}
  s_add_u32 s{sT0}, s{sT0}, s{sJ}
  s_mul_i32 s{sT0}, s{sT0}, 1280
  s_mul_i32 s{sT1}, s{sC}, 160
  s_add_u32 s{sO}, s{sT0}, s{sT1}
  s_mul_i32 s{sT0}, s{sW}, 14
  s_cmp_eq_u32 s{sW}, 3
  s_cselect_b32 s{sT1}, 1, 0
  s_sub_u32 s{sT0}, s{sT0}, s{sT1}
  s_mul_i32 s{sT1}, s{sJ}, 54
  s_add_u32 s{sT1}, s{sT1}, s{sT0}
  s_lshl_b32 s{sH}, s{sT1}, 12
  s_mul_i32 s{sT1}, s{sC}, 54
  s_add_u32 s{sT1}, s{sT1}, s{sT0}
  s_mul_i32 s{sWo}, s{sT1}, 5120
  s_waitcnt lgkmcnt(0)
""")
    srd(a, sX, 4, SZ_X); srd(a, sRE, 8, SZ_WS); srd(a, sIM, 10, SZ_WS); srd(a, sOUT, 12, SZ_X)
    srd_off(a, sHF, 14, WS_HF, SZ_HF); srd_off(a, sW2, 14, WS_W2F, SZ_W2F); srd_off(a, sY1, 14, WS_Y1, SZ_Y1)
    for rt in range(4):
        a(f"  buffer_load_dwordx2 {vr(vGr+2*rt,2)}, v{vGa}, {sr(sRE)}, s{sG+rt} offen")
        a(f"  buffer_load_dwordx2 {vr(vGr+8+2*rt,2)}, v{vGa}, {sr(sIM)}, s{sG+rt} offen")
    for eb in range(5):
        for jj in range(4):
            a(f"  buffer_load_dword v{A(3,eb)+jj}, v{vYa+eb}, {sr(sY1)}, s{sY+jj} offen")
    for eb in range(5):
        a(f"  buffer_load_dwordx2 {vr(vX+2*eb,2)}, v{vO}, {sr(sX)}, s{sO} offen offset:{32*eb}")
    NSTEP = 14
    def loadA(k, eb):
        if eb < 4: a(f"  buffer_load_dwordx4 {vr(A(k,eb))}, v{vL16}, {sr(sW2)}, s{sWo} offen offset:{1024*eb}")
        else:      a(f"  buffer_load_dwordx4 {vr(A(k,eb))}, v{vL16b}, {sr(sW2)}, s{sWo} offen")
    def loadB(k, rt):
        a(f"  buffer_load_dwordx4 {vr(B(k,rt))}, v{vL16}, {sr(sHF)}, s{sH} offen offset:{1024*rt}")
    def advance(i):
        if i+1 == NSTEP-1:
            a(f"  s_add_u32 s{sH}, s{sH}, 4096\n  s_add_u32 s{sWo}, s{sWo}, 5120\n  s_cmp_ge_u32 s{sW}, 2\n  s_cselect_b32 s{sH}, {OOB}, s{sH}\n  s_cselect_b32 s{sWo}, {OOB}, s{sWo}")
        else:
            a(f"  s_add_u32 s{sH}, s{sH}, 4096\n  s_add_u32 s{sWo}, s{sWo}, 5120")
    for i in range(3):
        for eb in range(5): loadA(i, eb)
        for rt in range(4): loadB(i, rt)
        advance(i)
    a("  s_waitcnt vmcnt(32)")
    for rt in range(4):
        re0, im0 = vGr+2*rt, vGr+8+2*rt
        a(f"  v_xor_b32 v{im0}, s{sSGN}, v{im0}\n  v_xor_b32 v{im0+1}, s{sSGN}, v{im0+1}")
    for rt in range(4):
        re0, im0 = vGr+2*rt, vGr+8+2*rt
        b = B(3, rt)
        a(f"  v_perm_b32 v{b}, v{im0}, v{re0}, s{sP0}\n  v_perm_b32 v{b+1}, v{im0}, v{re0}, s{sP1}")
        a(f"  v_perm_b32 v{b+2}, v{im0+1}, v{re0+1}, s{sP0}\n  v_perm_b32 v{b+3}, v{im0+1}, v{re0+1}, s{sP1}")
    a("  s_nop 1")
    for eb in range(5):
        for rt in range(4):
            a(mfma(ar(acc(eb,rt)), vr(A(3,eb)), vr(B(3,rt)), "0"))
    for eb in range(5): loadA(3, eb)
    for rt in range(4): loadB(3, rt)
    advance(3)
    for i in range(NSTEP):
        k = i % 4
        outstanding = 9 * (min(i+3, NSTEP-1) - i)
        a(f"  s_waitcnt vmcnt({outstanding})")
        pre = i + 4 < NSTEP
        for eb in range(5):
            for rt in range(4):
                a(mfma(ar(acc(eb,rt)), vr(A(k,eb)), vr(B(k,rt)), ar(acc(eb,rt))))
            if pre: loadA(k, eb)
        if pre:
            for rt in range(4): loadB(k, rt)
            advance(i+4)
    vA0, vA1, vA2 = 6, 7, 8
    a(f"""
  s_mul_i32 s{sT0}, s{sW}, 20480
  v_add_u32 v{vA0}, s{sT0}, v{vL16}
  s_mul_i32 s{sT1}, s{sW}, 5120
  v_add_u32 v{vA1}, s{sT1}, v{vL16}
  v_add_u32 v{vA2}, 40960, v{vA1}
  s_nop 7
""")
    for rt in range(4):
        for eb in range(5):
            a(f"  ds_write_b128 v{vA0}, {ar(acc(eb,rt))} offset:{(rt*5+eb)*1024}")
    a("  s_waitcnt lgkmcnt(0)\n  s_barrier")
    def red_reads(eb):
        for wp in range(4):
            d = vR + (eb*4+wp)*4
            a(f"  ds_read_b128 {vr(d)}, v{vA1 if wp<2 else vA2} offset:{(wp%2)*20480 + eb*1024}")
    for eb in range(3): red_reads(eb)
    for eb in range(5):
        a(f"  s_waitcnt lgkmcnt({[8,8,8,4,0][eb]})")
        if eb < 2: red_reads(eb+3)
        p = [vR + (eb*4+wp)*4 for wp in range(4)]
        a(f"  v_pk_add_f32 {vr(p[0],2)}, {vr(p[0],2)}, {vr(p[1],2)}")
        a(f"  v_pk_add_f32 {vr(p[0]+2,2)}, {vr(p[0]+2,2)}, {vr(p[1]+2,2)}")
        a(f"  v_pk_add_f32 {vr(p[2],2)}, {vr(p[2],2)}, {vr(p[3],2)}")
        a(f"  v_pk_add_f32 {vr(p[2]+2,2)}, {vr(p[2]+2,2)}, {vr(p[3]+2,2)}")
        x0 = vX + 2*eb
        t = 100
        a(f"  v_lshlrev_b32 v{t}, 16, v{x0}\n  v_and_b32 v{t+1}, 0xffff0000, v{x0}\n  v_lshlrev_b32 v{t+2}, 16, v{x0+1}\n  v_and_b32 v{t+3}, 0xffff0000, v{x0+1}")
        a(f"  v_pk_add_f32 {vr(p[0],2)}, {vr(p[0],2)}, {vr(p[2],2)}")
        a(f"  v_pk_add_f32 {vr(p[0]+2,2)}, {vr(p[0]+2,2)}, {vr(p[2]+2,2)}")
        a(f"  v_pk_add_f32 {vr(p[0],2)}, {vr(p[0],2)}, {vr(t,2)}")
        a(f"  v_pk_add_f32 {vr(p[0]+2,2)}, {vr(p[0]+2,2)}, {vr(t+2,2)}")
        o = 104 + 2*eb
        a(f"  v_cvt_pk_bf16_f32 v{o}, v{p[0]}, v{p[0]+1}\n  v_cvt_pk_bf16_f32 v{o+1}, v{p[0]+2}, v{p[0]+3}")
        a(f"  buffer_store_dwordx2 {vr(o,2)}, v{vO}, {sr(sOUT)}, s{sO} offen offset:{32*eb}")
    a(f"L_{name}_end:\n  s_endpgm")
    return dict(vgpr=188, agpr=80)
```

```python
import sys
from gen_common import *
import gen_k1, gen_k2
def gen(stamps=False):
    a = Asm()
    a(HEAD.rstrip())
    a("; @launch kernel=k1_kernel grid=(256,1,1) block=(512,1,1) lds=163840")
    a("; @launch kernel=k2_kernel grid=(256,1,1) block=(256,1,1) lds=81920")
    a('.amdgcn_target "amdgcn-amd-amdhsa--gfx950"\n.text')
    gen_k1.gen_k1(a, stamps=stamps); gen_k2.gen_k2(a, stamps=stamps)
    a('.section .rodata,"a"')
    a(".p2align 6"); a(kernel_desc("k1_kernel", 256, accum=256))
    a(".p2align 6"); a(kernel_desc("k2_kernel", 188+80, accum=188))
    return a.text()
if __name__ == "__main__":
    out = sys.argv[1] if len(sys.argv) > 1 else "v1.s"
    open(out, "w").write(gen(stamps=(sys.argv[2] if len(sys.argv) > 2 else False)))
```

```python
from asmlib import *
HEAD = open("parallel_sum__spectral_fnet__dense_activation_relu__prompt.s.ref").read().split("; Override")[0]
WS_HF, WS_W2F, WS_Y1 = 0, 8 << 20, 12 << 20
SZ_HF, SZ_W2F, SZ_Y1 = 32*54*4096, 8*54*5120, 2*64*32*640
SZ_X = 2048*1280
SZ_WS = 2048*4096
SZ_WD = 640*1280
SZ_W1 = 640*3456
SZ_W2 = 1728*1280
OOB = 0x7fff0000

def srd(a, d, lo, size):
    a(f"  s_mov_b32 s{d}, s{lo}\n  s_mov_b32 s{d+1}, s{lo+1}\n  s_mov_b32 s{d+2}, {size}\n  s_mov_b32 s{d+3}, 0x00020000")
def srd_off(a, d, lo, off, size):
    a(f"  s_add_u32 s{d}, s{lo}, {off}\n  s_addc_u32 s{d+1}, s{lo+1}, 0\n  s_mov_b32 s{d+2}, {size}\n  s_mov_b32 s{d+3}, 0x00020000")
def vr(b, n=4): return f"v[{b}:{b+n-1}]"
def ar(b, n=4): return f"a[{b}:{b+n-1}]"
def sr(b, n=4): return f"s[{b}:{b+n-1}]"
def mfma(d, A, B, c):
    return f"  v_mfma_f32_16x16x32_bf16 {d}, {A}, {B}, {c}"

STAMP_BASE = 24 << 20
class Stamps:
    def __init__(self, on, kidx): self.on = on; self.kidx = kidx
    def mark(self, a, i):
        if self.on:
            if i == 0: a("  s_memtime s[92:93]")
            a(f"  s_memrealtime s[{70+2*i}:{71+2*i}]\n  s_waitcnt lgkmcnt(0)")
    def flush(self, a, wave_sgpr, ws_lo):
        if not self.on: return
        a(f"""  s_memrealtime s[84:85]
  s_memtime s[82:83]
  s_waitcnt lgkmcnt(0)
  s_sub_u32 s82, s82, s92
  s_add_u32 s88, s{ws_lo}, {STAMP_BASE + self.kidx*(1<<20)}
  s_addc_u32 s89, s{ws_lo+1}, 0
  s_mov_b32 s90, 0x100000
  s_mov_b32 s91, 0x00020000
  s_lshl_b32 s86, s2, 3
  s_add_u32 s86, s86, s{wave_sgpr}
  s_lshl_b32 s86, s86, 5
  v_mov_b32 v40, s70
  v_mov_b32 v41, s72
  v_mov_b32 v42, s74
  v_mov_b32 v43, s76
  v_mov_b32 v44, s78
  v_mov_b32 v45, s80
  v_mov_b32 v46, s82
  v_mov_b32 v47, s84
  v_mov_b32 v48, s86
  s_nop 1
  buffer_store_dwordx4 v[40:43], v48, s[88:91], 0 offen
  buffer_store_dwordx4 v[44:47], v48, s[88:91], 0 offen offset:16""")

class DbgStamps(Stamps):
    def flush(self, a, wave_sgpr, ws_lo, role_sgpr=None):
        if not self.on: return
        lab = f"L_dbgskip_{id(a)}_{len(a.lines)}"
        off = 0
        a(f"""  s_memrealtime s[84:85]
  s_load_dwordx2 s[88:89], s[0:1], 72
  s_waitcnt lgkmcnt(0)
  s_cmp_lg_u32 s{wave_sgpr}, 0
  s_cbranch_scc1 {lab}
  s_sub_u32 s88, s88, {off}
  s_subb_u32 s89, s89, 0
  s_mov_b32 s90, 256
  s_mov_b32 s91, 0x00020000
  s_mov_b64 exec, 1
  s_not_b32 s86, s70""")
        if self.kidx == 0:
            a(f"  s_cmp_eq_u32 s{role_sgpr}, 2\n  s_cselect_b32 s87, 12, 0")
            items = [("s86", 0, False), ("s70", 4, False), ("s72", 8, False), ("s76", 12, True), ("s78", 16, True), ("s84", 20, True)]
        else:
            a("  s_mov_b32 s87, 0")
            items = [("s86", 36, False), ("s70", 40, False), ("s74", 44, False), ("s76", 48, False), ("s84", 52, False)]
        for reg, o, rel in items:
            a(f"  v_mov_b32 v40, {reg}\n  v_mov_b32 v41, {o}")
            if rel: a("  v_add_u32 v41, s87, v41")
            a("  buffer_atomic_umax v40, v41, s[88:91], 0 offen\n  s_waitcnt vmcnt(0)")
        a(f"{lab}:")
```

```python
from gen_common import *

sX, sB, sO, sW2, sW2F, sRE, sIM = 24, 28, 32, 36, 40, 44, 48
sW, sJ, sG0, sP = 52, 53, 54, 55
sT0, sT1, sT2, sT3 = 56, 57, 58, 59
sM, sK, sCnt, sPW = 60, 61, 62, 63
sRole = 64
sQ = 65
sSgn = 66
sC640, sEps = 67, 68
vLane, vR8, vC8, vN, vG = 1, 2, 3, 4, 5
vT = 6
vXo = 14
vXw1 = 15
RAW = 16
UNP = 56
SUM, SQ = 136, 144
vMean, vRs, vC0, vSg = 152, 154, 156, 158
vAD = 160
F_AD = 160
ACC = 176

XN_PITCH = 1280
RING = 81920

def w_params(role):
    nb = 5 if role == "W" else 4
    pitch = nb * 128
    return dict(nb=nb, pitch=pitch, PC=pitch//16, SLOT=32*pitch, L=nb)

ST = Stamps(False, 0)
def endpgm(a):
    if isinstance(ST, DbgStamps): ST.flush(a, sW, 20, sRole)
    else: ST.flush(a, sW, 20)
    a('  s_endpgm')

def common_entry(a, name):
    a(kernel_header(name))
    a(f"""
  s_cmp_ge_u32 s2, 256
  s_cbranch_scc1 L_{name}_end""")
    ST.mark(a, 0)
    a(f"""
  s_load_dwordx2 s[4:5], s[0:1], 0
  s_load_dwordx4 s[8:11], s[0:1], 8
  s_load_dwordx4 s[12:15], s[0:1], 24
  s_load_dwordx4 s[16:19], s[0:1], 48
  s_load_dwordx2 s[20:21], s[0:1], 80
  v_lshrrev_b32 v{vT}, 6, v0
  v_and_b32 v{vLane}, 63, v0
  v_readfirstlane_b32 s{sW}, v{vT}
  v_lshrrev_b32 v{vR8}, 3, v{vLane}
  v_and_b32 v{vC8}, 7, v{vLane}
  v_and_b32 v{vN}, 15, v{vLane}
  v_lshrrev_b32 v{vG}, 4, v{vLane}
  ; decode
  s_and_b32 s{sT0}, s2, 7
  s_lshr_b32 s{sT1}, s2, 3            ; m
  s_lshr_b32 s{sT2}, s{sT0}, 1        ; r
  s_and_b32 s{sP}, s{sT0}, 1          ; cc
  s_lshl_b32 s{sT2}, s{sT2}, 3
  s_lshr_b32 s{sT3}, s{sT1}, 2
  s_add_u32 s{sJ}, s{sT2}, s{sT3}     ; j
  s_and_b32 s{sT1}, s{sT1}, 3         ; rl
  s_mov_b32 s{sT0}, 0x000F0500
  s_cmp_eq_u32 s{sP}, 0
  s_cselect_b32 s{sT0}, s{sT0}, 0x0017130A
  s_lshl_b32 s{sT2}, s{sT1}, 3
  s_lshr_b32 s{sT0}, s{sT0}, s{sT2}
  s_and_b32 s{sG0}, s{sT0}, 0xff
  s_cmp_lt_u32 s{sG0}, 15
  s_cselect_b32 s{sRole}, 0, 1
  s_cmp_eq_u32 s{sT1}, 3
  s_cselect_b32 s{sRole}, 2, s{sRole}
  s_and_b32 s{sPW}, s{sW}, 3
  s_mov_b32 s{sC640}, 0x3acccccd
  s_mov_b32 s{sEps}, 0x3727c5ac
  s_lshl_b32 s{sT0}, s{sW}, 3
  v_add_u32 v{vT}, s{sT0}, v{vR8}          ; i
  v_and_b32 v{vT+1}, 31, v{vT}
  v_lshlrev_b32 v{vT+1}, 6, v{vT+1}
  v_lshrrev_b32 v{vT+2}, 5, v{vT}
  v_lshlrev_b32 v{vT+2}, 5, v{vT+2}
  v_add3_u32 v{vT+1}, v{vT+1}, v{vT+2}, s{sJ}
  v_mul_u32_u24 v{vT+1}, 1280, v{vT+1}
  v_lshlrev_b32 v{vT+2}, 4, v{vC8}
  v_add_u32 v{vXo}, v{vT+1}, v{vT+2}
  s_waitcnt lgkmcnt(0)
""")
    srd(a, sX, 4, SZ_X)
    for u in range(10):
        a(f"  buffer_load_dwordx4 {vr(RAW+4*u)}, v{vXo}, {sr(sX)}, 0 offen offset:{128*u}")
    a(f"""
  s_cmp_eq_u32 s{sRole}, 2
  s_cbranch_scc1 L_F_pre
  s_cmp_eq_u32 s{sRole}, 1
  s_cbranch_scc1 L_N_pre
""")

def ffn_pre(a, role):
    P = w_params(role); nb, pitch, PC, SLOT, L = P["nb"], P["pitch"], P["PC"], P["SLOT"], P["L"]
    a(f"L_{role}_pre:")
    srd(a, sB, 16, SZ_W1); srd_off(a, sO, 20, WS_HF, SZ_HF)
    a(f"  s_cmp_ge_u32 s{sW}, 4\n  s_cbranch_scc0 L_{role}_pre_c")
    a(f"  s_mul_i32 s{sT0}, s{sPW}, {64*L}\n  s_lshl_b32 s{sT1}, s{sG0}, 7")
    for ii in range(L):
        t = vT+1
        a(f"  v_add_u32 v{t}, s{sT0}, v{vLane}")
        if ii: a(f"  v_add_u32 v{t}, {64*ii}, v{t}")
        if role == "W":
            a(f"  v_mul_u32_u24 v{t+1}, 1639, v{t}\n  v_lshrrev_b32 v{t+1}, 16, v{t+1}")
        else:
            a(f"  v_lshrrev_b32 v{t+1}, 5, v{t}")
        a(f"  v_mul_u32_u24 v{t+2}, {PC}, v{t+1}\n  v_sub_u32 v{t+2}, v{t}, v{t+2}")
        if role == "W":
            a(f"  v_bfe_u32 v{t+3}, v{t+1}, 1, 1\n  v_bfe_u32 v{t+4}, v{t+1}, 3, 1\n  v_lshl_or_b32 v{t+3}, v{t+4}, 1, v{t+3}")
        else:
            a(f"  v_and_b32 v{t+3}, 3, v{t+1}\n  v_bfe_u32 v{t+4}, v{t+1}, 3, 1\n  v_lshl_or_b32 v{t+3}, v{t+4}, 2, v{t+3}")
        a(f"""  v_lshrrev_b32 v{t+4}, 1, v{t+2}
  v_xor_b32 v{t+4}, v{t+4}, v{t+3}
  v_lshlrev_b32 v{t+4}, 5, v{t+4}
  v_and_b32 v{t+2}, 1, v{t+2}
  v_lshl_add_u32 v{t+4}, v{t+2}, 4, v{t+4}
  v_mul_u32_u24 v{t+1}, 3456, v{t+1}
  v_add3_u32 v{vAD+ii}, v{t+1}, v{t+4}, s{sT1}""")
    a(f"  s_mul_i32 s{sM}, s{sPW}, {L*1024}\n  s_add_u32 s{sM}, s{sM}, {RING}\n  s_mov_b32 s{sK}, 0")
    for st in range(4):
        for ii in range(L):
            a(f"  s_add_u32 m0, s{sM}, {st*SLOT + ii*1024}\n  s_nop 0\n  buffer_load_dwordx4 v{vAD+ii}, {sr(sB)}, s{sK} offen lds")
        a(f"  s_add_u32 s{sK}, s{sK}, 110592")
    a(f"  s_waitcnt vmcnt({4*L})\n  s_branch L_ln")
    a(f"L_{role}_pre_c:")
    for qp in range(4):
        a(f"""  v_add_u32 v{vT+1}, {4*qp}, v{vG}
  v_xor_b32 v{vT+1}, v{vT+1}, v{vN}
  v_lshlrev_b32 v{vT+1}, 4, v{vT+1}
  v_mul_u32_u24 v{vT+2}, 1280, v{vN}
  v_add_u32 v{vAD+qp}, v{vT+1}, v{vT+2}""")
    a(f"""  v_bfe_u32 v{vT+1}, v{vLane}, 2, 2        ; r4
  v_and_b32 v{vT+2}, 3, v{vLane}           ; cc
  v_lshl_add_u32 v{vT+3}, v{vG}, 3, v{vT+1}  ; row
  v_mul_u32_u24 v{vT+3}, {pitch}, v{vT+3}
  v_lshl_add_u32 v{vT+3}, v{vT+2}, 3, v{vT+3}
  v_add_u32 v{vT+3}, {RING}, v{vT+3}
  v_and_b32 v{vT+4}, 1, v{vG}""")
    if role == "W":
        a(f"  v_lshrrev_b32 v{vT+5}, 1, v{vT+1}\n  v_lshl_or_b32 v{vT+4}, v{vT+4}, 1, v{vT+5}")
    else:
        a(f"  v_lshl_or_b32 v{vT+4}, v{vT+4}, 2, v{vT+1}")
    a(f"  s_mul_i32 s{sT0}, s{sW}, {nb}")
    for b in range(nb):
        a(f"""  s_add_u32 s{sT1}, s{sT0}, {b}
  v_xor_b32 v{vT+5}, s{sT1}, v{vT+4}
  v_lshl_add_u32 v{vAD+4+b}, v{vT+5}, 5, v{vT+3}""")
    for i in range(16*nb): a(f"  v_mov_b32 v{ACC+i}, 0")
    a("  s_waitcnt vmcnt(0)\n  s_branch L_ln")

def f_pre(a):
    a("L_F_pre:")
    a(f"""  s_cmp_ge_u32 s{sPW}, 2
  s_cselect_b32 s{sB}, s14, s12
  s_cselect_b32 s{sB+1}, s15, s13
  s_mov_b32 s{sB+2}, {SZ_WD}
  s_mov_b32 s{sB+3}, 0x00020000""")
    srd_off(a, sO, 20, WS_Y1, SZ_Y1)
    a(f"""  s_lshl_b32 s{sQ}, s{sJ}, 1
  s_add_u32 s{sQ}, s{sQ}, s{sP}          ; fi = 2j+p
  s_cmp_eq_u32 s{sP}, 0
  s_cselect_b32 s{sSgn}, 1.0, -1.0
  s_cmp_ge_u32 s{sW}, 4
  s_cbranch_scc0 L_F_pre_c""")
    srd(a, sW2, 18, SZ_W2); srd_off(a, sW2F, 20, WS_W2F, SZ_W2F)
    a(f"""  s_sub_u32 s{sT0}, 2, s{sP}             ; e0
  s_and_b32 s{sT1}, s{sPW}, 1
  s_lshl_b32 s{sT1}, s{sT1}, 4
  s_add_u32 s{sT0}, s{sT0}, s{sT1}
  v_lshl_add_u32 v{vT+1}, v{vR8}, 1, s{sT0}
  v_mul_u32_u24 v{vT+1}, 1280, v{vT+1}
  s_lshl_b32 s{sT1}, s{sPW}, 2
  v_add_u32 v{vT+2}, s{sT1}, v{vG}
  v_and_b32 v{vT+2}, 7, v{vT+2}
  v_xor_b32 v{vT+2}, v{vT+2}, v{vC8}
  v_lshl_add_u32 v{vAD}, v{vT+2}, 4, v{vT+1}
  s_lshl_b32 s{sM}, s{sPW}, 10
  s_add_u32 s{sM}, s{sM}, 40960""")
    for kc in range(2):
        f_issue_chunk(a, kc)
    a(f"  s_mul_i32 s{sT0}, s{sPW}, 640")
    for ii in range(10):
        t = vT+1
        a(f"""  v_add_u32 v{t}, s{sT0}, v{vLane}
  v_add_u32 v{t}, {64*ii}, v{t}
  v_mul_u32_u24 v{t+1}, 1639, v{t}
  v_lshrrev_b32 v{t+1}, 17, v{t+1}
  v_mul_u32_u24 v{t+2}, 80, v{t+1}
  v_sub_u32 v{t+2}, v{t}, v{t+2}
  v_lshrrev_b32 v{t+3}, 1, v{t+2}
  v_and_b32 v{t+4}, 7, v{t+1}
  v_xor_b32 v{t+3}, v{t+3}, v{t+4}
  v_lshlrev_b32 v{t+3}, 5, v{t+3}
  v_and_b32 v{t+2}, 1, v{t+2}
  v_lshl_add_u32 v{t+3}, v{t+2}, 4, v{t+3}
  v_mul_u32_u24 v{t+1}, 1280, v{t+1}
  v_add_u32 v{vAD+1+ii}, v{t+1}, v{t+3}""")
    a(f"""  s_mul_i32 s{sT0}, s{sQ}, {32*1280}
  s_cmp_lt_u32 s{sQ}, 54
  s_cselect_b32 s{sT0}, s{sT0}, {OOB}
  s_mul_i32 s{sT1}, s{sPW}, 10240
  s_add_u32 s{sT1}, s{sT1}, 122880""")
    for ii in range(10):
        a(f"  s_add_u32 m0, s{sT1}, {ii*1024}\n  s_nop 0\n  buffer_load_dwordx4 v{vAD+1+ii}, {sr(sW2)}, s{sT0} offen lds")
    a("  s_waitcnt vmcnt(30)\n  s_branch L_ln")
    a("L_F_pre_c:")
    srd(a, sRE, 8, SZ_WS); srd(a, sIM, 10, SZ_WS)
    a(f"  s_and_b32 s{sT0}, s{sW}, 1\n  s_lshr_b32 s{sT1}, s{sW}, 1")
    for ql in range(2):
        a(f"""  v_add_u32 v{vT+1}, {4*ql}, v{vG}
  v_lshrrev_b32 v{vT+2}, 1, v{vN}
  v_xor_b32 v{vT+1}, v{vT+1}, v{vT+2}
  v_lshlrev_b32 v{vT+1}, 4, v{vT+1}
  v_mul_u32_u24 v{vT+2}, 640, v{vN}
  s_mul_i32 s{sT2}, s{sT0}, {32*640}
  v_add3_u32 v{F_AD+ql}, v{vT+1}, v{vT+2}, s{sT2}
  v_lshlrev_b32 v{vT+2}, 7, v{vN}
  s_mul_i32 s{sT2}, s{sT1}, 20480
  s_add_u32 s{sT2}, s{sT2}, 40960
  v_add3_u32 v{F_AD+2+ql}, v{vT+1}, v{vT+2}, s{sT2}""")
    a(f"""  s_mul_i32 s{sT2}, s{sT0}, 20480
  s_mul_i32 s{sT3}, s{sT1}, 320
  s_add_u32 s{sT2}, s{sT2}, s{sT3}
  s_add_u32 s{sT2}, s{sT2}, 81920
  v_mul_u32_u24 v{vT+1}, 2560, v{vG}
  v_lshl_add_u32 v{vT+1}, v{vN}, 2, v{vT+1}
  v_add_u32 v{F_AD+4}, s{sT2}, v{vT+1}""")
    a("  s_waitcnt vmcnt(0)\n  s_branch L_ln")


def f_issue_chunk(a, kc):
    for U in range(10):
        a(f"  s_add_u32 m0, s{sM}, {(kc%2)*40960 + U*4096}")
        a(f"  s_mov_b32 s{sK}, {U*40960 + 128*kc}")
        a(f"  buffer_load_dwordx4 v{vAD}, {sr(sB)}, s{sK} offen lds")

def ln_common(a):
    a("L_ln:")
    ST.mark(a, 1)
    for d in range(40):
        u0 = UNP + 2*d
        a(f"  v_lshlrev_b32 v{u0}, 16, v{RAW+d}\n  v_and_b32 v{u0+1}, 0xffff0000, v{RAW+d}")
        if d >= 1:
            dd = d-1; p = UNP + 2*dd; k = dd % 4
            if dd < 4:
                a(f"  v_pk_add_f32 {vr(SUM+2*k,2)}, {vr(p,2)}, 0\n  v_pk_mul_f32 {vr(SQ+2*k,2)}, {vr(p,2)}, {vr(p,2)}")
            else:
                a(f"  v_pk_add_f32 {vr(SUM+2*k,2)}, {vr(SUM+2*k,2)}, {vr(p,2)}\n  v_pk_fma_f32 {vr(SQ+2*k,2)}, {vr(p,2)}, {vr(p,2)}, {vr(SQ+2*k,2)}")
    dd = 39; p = UNP + 2*dd; k = dd % 4
    a(f"  v_pk_add_f32 {vr(SUM+2*k,2)}, {vr(SUM+2*k,2)}, {vr(p,2)}\n  v_pk_fma_f32 {vr(SQ+2*k,2)}, {vr(p,2)}, {vr(p,2)}, {vr(SQ+2*k,2)}")
    a(f"""  v_pk_add_f32 {vr(SUM,2)}, {vr(SUM,2)}, {vr(SUM+2,2)}
  v_pk_add_f32 {vr(SQ,2)}, {vr(SQ,2)}, {vr(SQ+2,2)}
  v_pk_add_f32 {vr(SUM+4,2)}, {vr(SUM+4,2)}, {vr(SUM+6,2)}
  v_pk_add_f32 {vr(SQ+4,2)}, {vr(SQ+4,2)}, {vr(SQ+6,2)}
  v_pk_add_f32 {vr(SUM,2)}, {vr(SUM,2)}, {vr(SUM+4,2)}
  v_pk_add_f32 {vr(SQ,2)}, {vr(SQ,2)}, {vr(SQ+4,2)}
  v_add_f32 v{SUM}, v{SUM}, v{SUM+1}
  v_add_f32 v{SQ}, v{SQ}, v{SQ+1}
  s_nop 0""")
    for ctl in ("quad_perm:[1,0,3,2]", "quad_perm:[2,3,0,1]", "row_half_mirror"):
        a(f"  v_add_f32_dpp v{SUM}, v{SUM}, v{SUM} {ctl} row_mask:0xf bank_mask:0xf")
        a(f"  v_add_f32_dpp v{SQ}, v{SQ}, v{SQ} {ctl} row_mask:0xf bank_mask:0xf")
        a("  s_nop 0")
    a(f"""  v_mul_f32 v{vMean}, s{sC640}, v{SUM}        ; mean
  v_mul_f32 v{SQ}, s{sC640}, v{SQ}            ; E[x^2]
  v_fma_f32 v{SQ}, -v{vMean}, v{vMean}, v{SQ}   ; var
  v_max_f32 v{SQ}, 0, v{SQ}
  v_cvt_pk_bf16_f32 v{vMean}, v{vMean}, v{vMean}
  v_cvt_pk_bf16_f32 v{SQ}, v{SQ}, v{SQ}
  v_and_b32 v{vMean}, 0xffff0000, v{vMean}
  v_and_b32 v{SQ}, 0xffff0000, v{SQ}
  v_add_f32 v{SQ}, s{sEps}, v{SQ}
  v_cvt_pk_bf16_f32 v{SQ}, v{SQ}, v{SQ}
  v_and_b32 v{SQ}, 0xffff0000, v{SQ}
  v_sqrt_f32 v{SQ}, v{SQ}
  s_nop 0
  v_cvt_pk_bf16_f32 v{SQ}, v{SQ}, v{SQ}
  v_and_b32 v{SQ}, 0xffff0000, v{SQ}
  v_rcp_f32 v{vRs}, v{SQ}
  s_nop 0
  v_mul_f32 v{vC0}, v{vMean}, v{vRs}
  v_sub_f32 v{vC0}, 0, v{vC0}                 ; -m*r
  s_cmp_eq_u32 s{sRole}, 2
  s_cbranch_scc1 L_ln_F""")
    a(f"""  v_and_b32 v{vT+1}, 15, v{vT}
  v_xor_b32 v{vT+2}, v{vC8}, v{vT+1}
  v_add_u32 v{vT+3}, 8, v{vC8}
  v_xor_b32 v{vT+3}, v{vT+3}, v{vT+1}
  v_mul_u32_u24 v{vT+1}, 1280, v{vT}
  v_lshl_add_u32 v{vXo}, v{vT+2}, 4, v{vT+1}
  v_lshl_add_u32 v{vXw1}, v{vT+3}, 4, v{vT+1}""")
    for u in range(10):
        for dq in range(4):
            d = 4*u + dq; p = UNP + 2*d
            a(f"  v_pk_fma_f32 {vr(p,2)}, {vr(p,2)}, {vr(vRs,2)}, {vr(vC0,2)} op_sel_hi:[1,0,0]")
        for dq in range(4):
            d = 4*u + dq; p = UNP + 2*d
            a(f"  v_cvt_pk_bf16_f32 v{RAW+d}, v{p}, v{p+1}")
        a(f"  ds_write_b128 v{vXo if u%2==0 else vXw1}, {vr(RAW+4*u)} offset:{256*(u>>1)}")
    a(f"""  s_cmp_eq_u32 s{sRole}, 1
  s_cbranch_scc1 L_N_main
  s_branch L_W_main""")
    a("L_ln_F:")
    a(f"""  v_mov_b32 v{vSg}, s{sSgn}
  v_add_f32 v{vT+1}, 1.0, v{vSg}
  v_mul_f32 v{vC0}, v{vC0}, v{vT+1}
  v_bfe_u32 v{vT+1}, v{vT}, 1, 3
  v_xor_b32 v{vT+1}, v{vT+1}, v{vC8}
  v_mul_u32_u24 v{vT+2}, 640, v{vT}
  v_lshl_add_u32 v{vXo}, v{vT+1}, 4, v{vT+2}""")
    for u in range(5):
        for dq in range(4):
            d = 4*u + dq; p = UNP + 2*d; p2 = UNP + 2*(d+20)
            a(f"  v_pk_fma_f32 {vr(p,2)}, {vr(p2,2)}, {vr(vSg,2)}, {vr(p,2)} op_sel_hi:[1,0,1]")
        for dq in range(4):
            d = 4*u + dq; p = UNP + 2*d
            a(f"  v_pk_fma_f32 {vr(p,2)}, {vr(p,2)}, {vr(vRs,2)}, {vr(vC0,2)} op_sel_hi:[1,0,0]")
        for dq in range(4):
            d = 4*u + dq; p = UNP + 2*d
            a(f"  v_cvt_pk_bf16_f32 v{RAW+d}, v{p}, v{p+1}")
        a(f"  ds_write_b128 v{vXo}, {vr(RAW+4*u)} offset:{128*u}")
    a("  s_branch L_F_main")

def ffn_main(a, role):
    P = w_params(role); nb, pitch, PC, SLOT, L = P["nb"], P["pitch"], P["PC"], P["SLOT"], P["L"]
    a(f"L_{role}_main:")
    a(f"  s_cmp_ge_u32 s{sW}, 4\n  s_cbranch_scc0 L_{role}_cons")
    a(f"  s_waitcnt vmcnt({3*L}) lgkmcnt(0)\n  s_barrier")
    a(f"  s_mov_b32 s{sCnt}, 16\n  s_mov_b32 s{sT0}, 0")
    a(f"L_{role}_ploop:")
    a(f"  s_waitcnt vmcnt({2*L})\n  s_barrier")
    a(f"  s_add_u32 s{sT1}, s{sM}, s{sT0}")
    for ii in range(L):
        a(f"  s_add_u32 m0, s{sT1}, {ii*1024}\n  s_nop 0\n  buffer_load_dwordx4 v{vAD+ii}, {sr(sB)}, s{sK} offen lds")
    a(f"""  s_add_u32 s{sK}, s{sK}, 110592
  s_add_u32 s{sT0}, s{sT0}, {SLOT}
  s_cmp_eq_u32 s{sT0}, {4*SLOT}
  s_cselect_b32 s{sT0}, 0, s{sT0}
  s_sub_u32 s{sCnt}, s{sCnt}, 1
  s_cmp_lg_u32 s{sCnt}, 0
  s_cbranch_scc1 L_{role}_ploop
  s_waitcnt vmcnt({2*L})
  s_barrier
  s_waitcnt vmcnt({L})
  s_barrier
  s_waitcnt vmcnt(0)
  s_barrier
  s_barrier""")
    endpgm(a)
    a(f"L_{role}_cons:")
    FB = [16, 16 + 16 + 4*nb]
    def X(k, rt): return FB[k] + 4*rt
    def Wf(k, b): return FB[k] + 16 + 4*b
    def acc(b, rt): return ACC + (b*4 + rt)*4
    def reads(t):
        k = t % 2; qp = t % 4; xo = 256 if t == 4 else 0
        r = []
        for rt in range(4):
            r.append(f"  ds_read_b128 {vr(X(k,rt))}, v{vAD+qp} offset:{rt*20480 + xo}")
        for b in range(nb):
            so = qp*SLOT
            r.append(f"  ds_read_b64_tr_b16 {vr(Wf(k,b),2)}, v{vAD+4+b} offset:{so}")
            r.append(f"  ds_read_b64_tr_b16 {vr(Wf(k,b)+2,2)}, v{vAD+4+b} offset:{so + 4*pitch}")
        return r
    ST.mark(a, 2)
    a("  s_waitcnt lgkmcnt(0)\n  s_barrier")
    ST.mark(a, 3)
    for l in reads(0): a(l)
    a(f"  s_mov_b32 s{sCnt}, 5\n  s_waitcnt lgkmcnt(0)")
    a(f"L_{role}_cloop:")
    for t in range(4):
        k = t % 2
        a("  s_barrier")
        rd = reads(t+1)
        mm = [mfma(vr(acc(b,rt)), vr(Wf(k,b)), vr(X(k,rt)), vr(acc(b,rt))) for b in range(nb) for rt in range(4)]
        ri = 0
        for i, m in enumerate(mm):
            a(m)
            if ri < len(rd): a(rd[ri]); ri += 1
        while ri < len(rd): a(rd[ri]); ri += 1
        if t == 3:
            for qp in range(4): a(f"  v_add_u32 v{vAD+qp}, 0x100, v{vAD+qp}")
        a("  s_waitcnt lgkmcnt(0)")
    a(f"  s_sub_u32 s{sCnt}, s{sCnt}, 1\n  s_cmp_lg_u32 s{sCnt}, 0\n  s_cbranch_scc1 L_{role}_cloop")
    ST.mark(a, 4)
    a(f"""  v_lshlrev_b32 v{vT}, 4, v{vLane}
  v_add_u32 v{vT+1}, 8, v{vT}
  s_mul_i32 s{sT0}, s{sJ}, 54
  s_lshl_b32 s{sT1}, s{sG0}, 1
  s_add_u32 s{sT0}, s{sT0}, s{sT1}         ; j*54 + 2*G0
  s_nop 4""")
    def pack(dst, b, rt):
        s = acc(b, rt)
        a(f"  v_cvt_pk_bf16_f32 v{dst}, v{s}, v{s+1}\n  v_cvt_pk_bf16_f32 v{dst+1}, v{s+2}, v{s+3}")
        a(f"  v_pk_max_i16 v{dst}, v{dst}, 0\n  v_pk_max_i16 v{dst+1}, v{dst+1}, 0")
    tmp = [16]
    def nxt(n):
        r = tmp[0]; tmp[0] += n
        return r
    def store_pair(b, qloc):
        a(f"  s_add_u32 s{sT2}, s{sT1}, {qloc}\n  s_lshl_b32 s{sT2}, s{sT2}, 12")
        for rt in range(4):
            d = nxt(4)
            pack(d, b, rt); pack(d+2, b+1, rt)
            a(f"  buffer_store_dwordx4 {vr(d)}, v{vT}, {sr(sO)}, s{sT2} offen offset:{1024*rt} sc1")
    def store_single(b, qloc, half):
        a(f"  s_add_u32 s{sT2}, s{sT1}, {qloc}\n  s_lshl_b32 s{sT2}, s{sT2}, 12")
        for rt in range(4):
            d = nxt(2)
            pack(d, b, rt)
            a(f"  buffer_store_dwordx2 {vr(d,2)}, v{vT+half}, {sr(sO)}, s{sT2} offen offset:{1024*rt} sc1")
    if role == "N":
        a(f"  s_lshl_b32 s{sT1}, s{sW}, 1\n  s_add_u32 s{sT1}, s{sT1}, s{sT0}")
        store_pair(0, 0); store_pair(2, 1)
    else:
        a(f"  s_lshr_b32 s{sT1}, s{sW}, 1\n  s_mul_i32 s{sT1}, s{sT1}, 5\n  s_add_u32 s{sT1}, s{sT1}, s{sT0}")
        a(f"  s_bitcmp1_b32 s{sW}, 0\n  s_cbranch_scc1 L_W_odd")
        store_pair(0, 0); store_pair(2, 1); store_single(4, 2, 0)
        ST.mark(a, 5); a("  s_waitcnt vmcnt(0)") if ST.on else None
        endpgm(a); a("L_W_odd:")
        tmp[0] = 16
        store_single(0, 2, 1); store_pair(1, 3); store_pair(3, 4)
    ST.mark(a, 5); a("  s_waitcnt vmcnt(0)") if ST.on else None
    endpgm(a)

def f_main(a):
    a("L_F_main:")
    a(f"  s_cmp_ge_u32 s{sW}, 4\n  s_cbranch_scc0 L_F_cons")
    a("  s_waitcnt vmcnt(20) lgkmcnt(0)\n  s_barrier")
    a("  s_waitcnt vmcnt(10)\n  s_barrier")
    f_issue_chunk(a, 2)
    a("  s_waitcnt vmcnt(0)\n  s_barrier")
    f_issue_chunk(a, 3)
    a(f"""  v_bfe_u32 v{vT+1}, v{vLane}, 2, 2          ; r4
  v_and_b32 v{vT+2}, 3, v{vLane}
  v_lshl_add_u32 v{vT+3}, v{vG}, 2, v{vT+1}    ; row = 4g + r4
  v_and_b32 v{vT+4}, 7, v{vT+3}                ; sigma
  v_mul_u32_u24 v{vT+3}, 1280, v{vT+3}
  v_lshl_add_u32 v{vT+3}, v{vT+2}, 3, v{vT+3}
  v_add_u32 v{vT+3}, 122880, v{vT+3}
  s_mul_i32 s{sT0}, s{sPW}, 10""")
    for i in range(10):
        a(f"""  s_add_u32 s{sT1}, s{sT0}, {i}
  v_xor_b32 v{vT+5}, s{sT1}, v{vT+4}
  v_lshl_add_u32 v{vT+5}, v{vT+5}, 5, v{vT+3}
  ds_read_b64_tr_b16 {vr(16+4*i,2)}, v{vT+5}
  ds_read_b64_tr_b16 {vr(16+4*i+2,2)}, v{vT+5} offset:{16*1280}""")
        if i == 6: a("  s_waitcnt lgkmcnt(0)")
    a(f"""  v_lshlrev_b32 v{vT}, 4, v{vLane}
  s_lshl_b32 s{sT0}, s{sPW}, 1
  s_mul_i32 s{sT0}, s{sT0}, 54
  s_add_u32 s{sT0}, s{sT0}, s{sQ}
  s_mul_i32 s{sT0}, s{sT0}, 5120
  s_cmp_lt_u32 s{sQ}, 54
  s_cselect_b32 s{sT0}, s{sT0}, {OOB}
  s_waitcnt lgkmcnt(0)""")
    for i in range(10):
        a(f"  s_add_u32 s{sT1}, s{sT0}, {(i//5)*54*5120 + (i%5)*1024}")
        a(f"  buffer_store_dwordx4 {vr(16+4*i)}, v{vT}, {sr(sW2F)}, s{sT1} offen sc1")
    a("  s_waitcnt vmcnt(10)\n  s_barrier")
    f_issue_chunk(a, 4)
    a("  s_waitcnt vmcnt(0)\n  s_barrier")
    a("  s_branch L_F_copy")
    a("L_F_cons:")
    AB = [16, 32]; BB = [48, 64]
    CC, SS, NN = 80, 88, 96
    FA = [104, 112]; YY = [120, 136]
    def acc(u, blk, rtl): return ACC + ((u*2 + blk)*2 + rtl)*4
    a(f"  v_mul_u32_u24 v{vT+1}, 262144, v{vN}\n  v_lshl_add_u32 v{vT+1}, v{vG}, 3, v{vT+1}\n  s_mov_b32 s{sT0}, {16*262144}")
    for h in range(2):
        so = "0" if h == 0 else f"s{sT0}"
        a(f"  buffer_load_dwordx2 {vr(CC+4*h,2)}, v{vT+1}, {sr(sRE)}, {so} offen")
        a(f"  buffer_load_dwordx2 {vr(CC+4*h+2,2)}, v{vT+1}, {sr(sRE)}, {so} offen offset:32")
        a(f"  buffer_load_dwordx2 {vr(SS+4*h,2)}, v{vT+1}, {sr(sIM)}, {so} offen")
        a(f"  buffer_load_dwordx2 {vr(SS+4*h+2,2)}, v{vT+1}, {sr(sIM)}, {so} offen offset:32")
    def reads(s):
        kc, u = divmod(s, 5); r = []
        if u == 0:
            for rtl in range(2):
                for ql in range(2):
                    r.append(f"  ds_read_b128 {vr(AB[kc%2] + 4*(2*rtl+ql))}, v{F_AD+ql} offset:{rtl*10240 + kc*128}")
        for blk in range(2):
            for ql in range(2):
                r.append(f"  ds_read_b128 {vr(BB[s%2] + 4*(2*blk+ql))}, v{F_AD+2+ql} offset:{(kc%2)*40960 + u*4096 + blk*2048}")
        return r
    ST.mark(a, 2)
    a("  s_waitcnt lgkmcnt(0)\n  s_barrier")
    ST.mark(a, 3)
    for l in reads(0): a(l)
    a("  s_waitcnt lgkmcnt(0)")
    for s in range(25):
        kc, u = divmod(s, 5)
        rd = []
        if s+1 < 25:
            if (s+1) % 5 == 0: a("  s_barrier")
            rd = reads(s+1)
        mm = []
        for ql in range(2):
            for blk in range(2):
                for rtl in range(2):
                    c = "0" if (kc == 0 and ql == 0) else vr(acc(u,blk,rtl))
                    mm.append(mfma(vr(acc(u,blk,rtl)), vr(AB[kc%2] + 4*(2*rtl+ql)), vr(BB[s%2] + 4*(2*blk+ql)), c))
        ri = 0
        for m in mm:
            a(m)
            if ri < len(rd): a(rd[ri]); ri += 1
        while ri < len(rd): a(rd[ri]); ri += 1
        a("  s_waitcnt lgkmcnt(0)")
    ST.mark(a, 4)
    a("  s_waitcnt vmcnt(0)")
    for i in range(8): a(f"  v_xor_b32 v{NN+i}, 0x80008000, v{SS+i}")
    def cvt(u):
        f = FA[u%2]
        for blk in range(2):
            for rtl in range(2):
                s0 = acc(u, blk, rtl); d = f + 4*blk + 2*rtl
                a(f"  v_cvt_pk_bf16_f32 v{d}, v{s0}, v{s0+1}\n  v_cvt_pk_bf16_f32 v{d+1}, v{s0+2}, v{s0+3}")
    def f32(u):
        f = FA[u%2]; y = YY[u%2]
        for h in range(2):
            a(mfma(vr(y+8*h),   vr(CC+4*h), vr(f),   "0"))
            a(mfma(vr(y+8*h+4), vr(SS+4*h), vr(f),   "0"))
        for h in range(2):
            a(mfma(vr(y+8*h),   vr(NN+4*h), vr(f+4), vr(y+8*h)))
            a(mfma(vr(y+8*h+4), vr(CC+4*h), vr(f+4), vr(y+8*h+4)))
    def emit_y(u):
        y = YY[u%2]
        for h in range(2):
            for r in range(4):
                a(f"  v_cvt_pk_bf16_f32 v{y+8*h+r}, v{y+8*h+r}, v{y+8*h+4+r}")
        for h in range(2):
            for r in range(4):
                a(f"  ds_write_b32 v{F_AD+4}, v{y+8*h+r} offset:{(16*h+r)*640 + 64*u}")
    a("  s_nop 4")
    cvt(0); a("  s_nop 1"); f32(0)
    for u in range(1, 5):
        cvt(u); a("  s_nop 1"); f32(u)
        emit_y(u-1)
    a("  s_nop 7"); emit_y(4)
    a("L_F_copy:")
    a("  s_waitcnt lgkmcnt(0)\n  s_barrier")
    a(f"""  v_lshlrev_b32 v{vT}, 4, v{vLane}
  s_mul_i32 s{sT0}, s{sW}, 5120
  s_add_u32 s{sT0}, s{sT0}, 81920
  v_add_u32 v{vT+1}, s{sT0}, v{vT}
  v_add_u32 v{vT+2}, 0x1000, v{vT}""")
    for i in range(5): a(f"  ds_read_b128 {vr(16+4*i)}, v{vT+1} offset:{1024*i}")
    a(f"""  s_lshr_b32 s{sT0}, s{sW}, 2
  s_lshl_b32 s{sT0}, s{sT0}, 5
  s_add_u32 s{sT0}, s{sT0}, s{sJ}
  s_mul_i32 s{sT0}, s{sT0}, 20480
  s_mul_i32 s{sT1}, s{sP}, {64*32*640}
  s_add_u32 s{sT0}, s{sT0}, s{sT1}
  s_mul_i32 s{sT1}, s{sPW}, 5120
  s_add_u32 s{sT0}, s{sT0}, s{sT1}""")
    for i in range(5):
        a(f"  s_waitcnt lgkmcnt({4-i})")
        if i < 4: a(f"  buffer_store_dwordx4 {vr(16+4*i)}, v{vT}, {sr(sO)}, s{sT0} offen offset:{1024*i} sc1")
        else:     a(f"  buffer_store_dwordx4 {vr(16+4*i)}, v{vT+2}, {sr(sO)}, s{sT0} offen sc1")
    ST.mark(a, 5); a("  s_waitcnt vmcnt(0)") if ST.on else None
    endpgm(a)

def gen_k1(a, name="k1_kernel", stamps=False):
    global ST
    ST = Stamps(bool(stamps), 0)
    common_entry(a, name)
    ffn_pre(a, "W"); ffn_pre(a, "N"); f_pre(a)
    ln_common(a)
    ffn_main(a, "W"); ffn_main(a, "N"); f_main(a)
    a(f"L_{name}_end:\n  s_endpgm")
    return dict(vgpr=256)
```

```python
from gen_common import *

def gen_k2(a, name="k2_kernel", stamps=False):
    sX, sRE, sIM, sOUT, sHF, sW2, sY1 = 16, 20, 24, 28, 32, 36, 40
    sW, sJ, sC, sTM, sSGN = 44, 45, 46, 47, 48
    sH, sWo = 49, 50
    sT0, sT1, sT2, sT3 = 51, 52, 53, 54
    sP0, sP1 = 55, 56
    sY = 57
    sG = 61
    sO = 65
    sMir = 66
    vLane, vN, vG_, vL16, vL16b = 1, 2, 3, 4, 5
    vT = 6
    vYa = 10
    vGa, vO = 15, 160
    BUF = [16 + 36*k for k in range(4)]
    vX = 162
    vGr = 172
    vR = 16
    def A(k, eb): return BUF[k] + 4*eb
    def B(k, rt): return BUF[k] + 20 + 4*rt
    def acc(eb, rt): return (eb*4 + rt)*4

    ST = DbgStamps(True, 1) if stamps == 'dbg' else Stamps(bool(stamps), 1)
    a(kernel_header(name))
    a(f"""
  s_cmp_ge_u32 s2, 256
  s_cbranch_scc1 L_{name}_end""")
    ST.mark(a, 0)
    a(f"""
  s_load_dwordx2 s[4:5], s[0:1], 0
  s_load_dwordx4 s[8:11], s[0:1], 8
  s_load_dwordx2 s[12:13], s[0:1], 64
  s_load_dwordx2 s[14:15], s[0:1], 80
  v_lshrrev_b32 v{vT}, 6, v0
  v_and_b32 v{vLane}, 63, v0
  v_readfirstlane_b32 s{sW}, v{vT}
  v_and_b32 v{vN}, 15, v{vLane}
  v_lshrrev_b32 v{vG_}, 4, v{vLane}
  v_lshlrev_b32 v{vL16}, 4, v{vLane}
  v_add_u32 v{vL16b}, 0x1000, v{vL16}
  s_and_b32 s{sT0}, s2, 7
  s_lshr_b32 s{sT1}, s2, 3          ; m
  s_lshr_b32 s{sT2}, s{sT0}, 1      ; r
  s_and_b32 s{sT0}, s{sT0}, 1       ; cc
  s_lshr_b32 s{sT3}, s{sT1}, 3      ; jl>>1
  s_lshl_b32 s{sT2}, s{sT2}, 2
  s_add_u32 s{sT2}, s{sT2}, s{sT3}  ; pi
  s_sub_u32 s{sJ}, 32, s{sT2}
  s_cmp_eq_u32 s{sT2}, 0
  s_cselect_b32 s{sJ}, 16, s{sJ}
  s_bitcmp1_b32 s{sT1}, 2           ; jl & 1
  s_cselect_b32 s{sJ}, s{sJ}, s{sT2}
  s_lshl_b32 s{sT0}, s{sT0}, 1
  s_bfe_u32 s{sT3}, s{sT1}, 0x10001 ; (m>>1)&1
  s_add_u32 s{sT0}, s{sT0}, s{sT3}  ; base
  s_sub_u32 s{sC}, 7, s{sT0}
  s_and_b32 s{sMir}, s{sT1}, 1
  s_cmp_eq_u32 s{sMir}, 1
  s_cselect_b32 s{sC}, s{sC}, s{sT0}
  s_sub_u32 s{sT3}, 32, s{sJ}
  s_and_b32 s{sT3}, s{sT3}, 31
  s_cselect_b32 s{sTM}, s{sJ}, s{sJ}
  s_cmp_eq_u32 s{sMir}, 1
  s_cselect_b32 s{sTM}, s{sT3}, s{sJ}
  s_cselect_b32 s{sSGN}, 0, 0x80008000
  s_mov_b32 s{sP0}, 0x05040100
  s_mov_b32 s{sP1}, 0x07060302
""")
    a(f"  s_mul_i32 s{sT0}, s{sC}, 80")
    for eb in range(5):
        a(f"""  v_add_u32 v{vT}, s{sT0}, v{vN}
  v_add_u32 v{vT}, {16*eb}, v{vT}            ; e
  v_sub_u32 v{vT+1}, 640, v{vT}
  s_cmp_eq_u32 s{sMir}, 1
  s_cselect_b64 vcc, -1, 0
  v_cndmask_b32 v{vT}, v{vT}, v{vT+1}, vcc   ; e'
  v_and_b32 v{vT+1}, 1, v{vT}                ; p
  v_lshrrev_b32 v{vT+2}, 1, v{vT}
  v_add_u32 v{vT+2}, v{vT+2}, v{vT+1}
  v_add_u32 v{vT+2}, -1, v{vT+2}             ; idx
  v_lshlrev_b32 v{vT+2}, 2, v{vT+2}
  v_mul_u32_u24 v{vT+1}, {64*32*640}, v{vT+1}
  v_add_u32 v{vT+2}, v{vT+2}, v{vT+1}
  v_mul_u32_u24 v{vT+1}, 81920, v{vG_}
  v_add_u32 v{vT+2}, v{vT+2}, v{vT+1}
  v_mov_b32 v{vT+1}, {OOB}
  v_cmp_eq_u32 vcc, 0, v{vT}
  s_nop 1
  v_cndmask_b32 v{vYa+eb}, v{vT+2}, v{vT+1}, vcc""")
    a(f"""
  v_mul_u32_u24 v{vGa}, 262144, v{vN}
  v_lshlrev_b32 v{vT}, 3, v{vG_}
  v_add_u32 v{vGa}, v{vGa}, v{vT}
  v_mul_u32_u24 v{vO}, 81920, v{vN}
  v_add_u32 v{vO}, v{vO}, v{vT}
  s_lshl_b32 s{sT0}, s{sW}, 4
  s_mul_i32 s{sT0}, s{sT0}, 20480
  s_mul_i32 s{sT1}, s{sTM}, 640
  s_add_u32 s{sY}, s{sT0}, s{sT1}
  s_add_u32 s{sY+1}, s{sY}, 20480
  s_add_u32 s{sY+2}, s{sY}, 40960
  s_add_u32 s{sY+3}, s{sY}, 61440
  s_lshl_b32 s{sT0}, s{sJ}, 12
  s_lshl_b32 s{sT1}, s{sW}, 5
  s_add_u32 s{sG}, s{sT0}, s{sT1}
  s_add_u32 s{sG+1}, s{sG}, {1024*4096}
  s_add_u32 s{sG+2}, s{sG}, {32*4096}
  s_add_u32 s{sG+3}, s{sG+1}, {32*4096}
  s_lshr_b32 s{sT0}, s{sW}, 1
  s_lshl_b32 s{sT0}, s{sT0}, 5
  s_and_b32 s{sT1}, s{sW}, 1
  s_lshl_b32 s{sT1}, s{sT1}, 10
  s_add_u32 s{sT0}, s{sT0}, s{sT1}
  s_add_u32 s{sT0}, s{sT0}, s{sJ}
  s_mul_i32 s{sT0}, s{sT0}, 1280
  s_mul_i32 s{sT1}, s{sC}, 160
  s_add_u32 s{sO}, s{sT0}, s{sT1}
  s_mul_i32 s{sT0}, s{sW}, 14
  s_cmp_eq_u32 s{sW}, 3
  s_cselect_b32 s{sT1}, 1, 0
  s_sub_u32 s{sT0}, s{sT0}, s{sT1}
  s_mul_i32 s{sT1}, s{sJ}, 54
  s_add_u32 s{sT1}, s{sT1}, s{sT0}
  s_lshl_b32 s{sH}, s{sT1}, 12
  s_mul_i32 s{sT1}, s{sC}, 54
  s_add_u32 s{sT1}, s{sT1}, s{sT0}
  s_mul_i32 s{sWo}, s{sT1}, 5120
  s_waitcnt lgkmcnt(0)
""")
    srd(a, sX, 4, SZ_X); srd(a, sRE, 8, SZ_WS); srd(a, sIM, 10, SZ_WS); srd(a, sOUT, 12, SZ_X)
    srd_off(a, sHF, 14, WS_HF, SZ_HF); srd_off(a, sW2, 14, WS_W2F, SZ_W2F); srd_off(a, sY1, 14, WS_Y1, SZ_Y1)
    for rt in range(4):
        a(f"  buffer_load_dwordx2 {vr(vGr+2*rt,2)}, v{vGa}, {sr(sRE)}, s{sG+rt} offen")
        a(f"  buffer_load_dwordx2 {vr(vGr+8+2*rt,2)}, v{vGa}, {sr(sIM)}, s{sG+rt} offen")
    for eb in range(5):
        for jj in range(4):
            a(f"  buffer_load_dword v{A(3,eb)+jj}, v{vYa+eb}, {sr(sY1)}, s{sY+jj} offen")
    for eb in range(5):
        a(f"  buffer_load_dwordx2 {vr(vX+2*eb,2)}, v{vO}, {sr(sX)}, s{sO} offen offset:{32*eb}")
    NSTEP = 14
    def loadA(k, eb):
        if eb < 4: a(f"  buffer_load_dwordx4 {vr(A(k,eb))}, v{vL16}, {sr(sW2)}, s{sWo} offen offset:{1024*eb}")
        else:      a(f"  buffer_load_dwordx4 {vr(A(k,eb))}, v{vL16b}, {sr(sW2)}, s{sWo} offen")
    def loadB(k, rt):
        a(f"  buffer_load_dwordx4 {vr(B(k,rt))}, v{vL16}, {sr(sHF)}, s{sH} offen offset:{1024*rt}")
    def advance(i):
        if i+1 == NSTEP-1:
            a(f"  s_add_u32 s{sH}, s{sH}, 4096\n  s_add_u32 s{sWo}, s{sWo}, 5120\n  s_cmp_ge_u32 s{sW}, 2\n  s_cselect_b32 s{sH}, {OOB}, s{sH}\n  s_cselect_b32 s{sWo}, {OOB}, s{sWo}")
        else:
            a(f"  s_add_u32 s{sH}, s{sH}, 4096\n  s_add_u32 s{sWo}, s{sWo}, 5120")
    for i in range(3):
        for eb in range(5): loadA(i, eb)
        for rt in range(4): loadB(i, rt)
        advance(i)
    ST.mark(a, 1)
    a("  s_waitcnt vmcnt(32)")
    ST.mark(a, 2)
    for rt in range(4):
        re0, im0 = vGr+2*rt, vGr+8+2*rt
        a(f"  v_xor_b32 v{im0}, s{sSGN}, v{im0}\n  v_xor_b32 v{im0+1}, s{sSGN}, v{im0+1}")
    for rt in range(4):
        re0, im0 = vGr+2*rt, vGr+8+2*rt
        b = B(3, rt)
        a(f"  v_perm_b32 v{b}, v{im0}, v{re0}, s{sP0}\n  v_perm_b32 v{b+1}, v{im0}, v{re0}, s{sP1}")
        a(f"  v_perm_b32 v{b+2}, v{im0+1}, v{re0+1}, s{sP0}\n  v_perm_b32 v{b+3}, v{im0+1}, v{re0+1}, s{sP1}")
    a("  s_nop 1")
    for eb in range(5):
        for rt in range(4):
            a(mfma(ar(acc(eb,rt)), vr(A(3,eb)), vr(B(3,rt)), "0"))
    for eb in range(5): loadA(3, eb)
    for rt in range(4): loadB(3, rt)
    advance(3)
    for i in range(NSTEP):
        k = i % 4
        outstanding = 9 * (min(i+3, NSTEP-1) - i)
        a(f"  s_waitcnt vmcnt({outstanding})")
        pre = i + 4 < NSTEP
        for eb in range(5):
            for rt in range(4):
                a(mfma(ar(acc(eb,rt)), vr(A(k,eb)), vr(B(k,rt)), ar(acc(eb,rt))))
            if pre: loadA(k, eb)
        if pre:
            for rt in range(4): loadB(k, rt)
            advance(i+4)
    ST.mark(a, 3)
    vA0, vA1, vA2 = 6, 7, 8
    a(f"""
  s_mul_i32 s{sT0}, s{sW}, 20480
  v_add_u32 v{vA0}, s{sT0}, v{vL16}
  s_mul_i32 s{sT1}, s{sW}, 5120
  v_add_u32 v{vA1}, s{sT1}, v{vL16}
  v_add_u32 v{vA2}, 40960, v{vA1}
  s_nop 7
""")
    for rt in range(4):
        for eb in range(5):
            a(f"  ds_write_b128 v{vA0}, {ar(acc(eb,rt))} offset:{(rt*5+eb)*1024}")
    a("  s_waitcnt lgkmcnt(0)\n  s_barrier")
    ST.mark(a, 4)
    def red_reads(eb):
        for wp in range(4):
            d = vR + (eb*4+wp)*4
            a(f"  ds_read_b128 {vr(d)}, v{vA1 if wp<2 else vA2} offset:{(wp%2)*20480 + eb*1024}")
    for eb in range(3): red_reads(eb)
    for eb in range(5):
        a(f"  s_waitcnt lgkmcnt({[8,8,8,4,0][eb]})")
        if eb < 2: red_reads(eb+3)
        p = [vR + (eb*4+wp)*4 for wp in range(4)]
        a(f"  v_pk_add_f32 {vr(p[0],2)}, {vr(p[0],2)}, {vr(p[1],2)}")
        a(f"  v_pk_add_f32 {vr(p[0]+2,2)}, {vr(p[0]+2,2)}, {vr(p[1]+2,2)}")
        a(f"  v_pk_add_f32 {vr(p[2],2)}, {vr(p[2],2)}, {vr(p[3],2)}")
        a(f"  v_pk_add_f32 {vr(p[2]+2,2)}, {vr(p[2]+2,2)}, {vr(p[3]+2,2)}")
        x0 = vX + 2*eb
        t = 100
        a(f"  v_lshlrev_b32 v{t}, 16, v{x0}\n  v_and_b32 v{t+1}, 0xffff0000, v{x0}\n  v_lshlrev_b32 v{t+2}, 16, v{x0+1}\n  v_and_b32 v{t+3}, 0xffff0000, v{x0+1}")
        a(f"  v_pk_add_f32 {vr(p[0],2)}, {vr(p[0],2)}, {vr(p[2],2)}")
        a(f"  v_pk_add_f32 {vr(p[0]+2,2)}, {vr(p[0]+2,2)}, {vr(p[2]+2,2)}")
        a(f"  v_pk_add_f32 {vr(p[0],2)}, {vr(p[0],2)}, {vr(t,2)}")
        a(f"  v_pk_add_f32 {vr(p[0]+2,2)}, {vr(p[0]+2,2)}, {vr(t+2,2)}")
        o = 104 + 2*eb
        a(f"  v_cvt_pk_bf16_f32 v{o}, v{p[0]}, v{p[0]+1}\n  v_cvt_pk_bf16_f32 v{o+1}, v{p[0]+2}, v{p[0]+3}")
        a(f"  buffer_store_dwordx2 {vr(o,2)}, v{vO}, {sr(sOUT)}, s{sO} offen offset:{32*eb}")
    ST.mark(a, 5); a("  s_waitcnt vmcnt(0)") if stamps else None
    ST.flush(a, sW, 14)
    a(f"L_{name}_end:\n  s_endpgm")
    return dict(vgpr=188, agpr=80)
```

```python
from asmlib import *
HEAD = open("parallel_sum__spectral_fnet__dense_activation_relu__prompt.s.ref").read().split("; Override")[0]
WS_HF, WS_W2F, WS_Y1 = 0, 8 << 20, 12 << 20
SZ_HF, SZ_W2F, SZ_Y1 = 32*54*4096, 8*54*5120, 2*64*32*640
SZ_X = 2048*1280
SZ_WS = 2048*4096
SZ_WD = 640*1280
SZ_W1 = 640*3456
SZ_W2 = 1728*1280
OOB = 0x7fff0000

def srd(a, d, lo, size):
    a(f"  s_mov_b32 s{d}, s{lo}\n  s_mov_b32 s{d+1}, s{lo+1}\n  s_mov_b32 s{d+2}, {size}\n  s_mov_b32 s{d+3}, 0x00020000")
def srd_off(a, d, lo, off, size):
    a(f"  s_add_u32 s{d}, s{lo}, {off}\n  s_addc_u32 s{d+1}, s{lo+1}, 0\n  s_mov_b32 s{d+2}, {size}\n  s_mov_b32 s{d+3}, 0x00020000")
def vr(b, n=4): return f"v[{b}:{b+n-1}]"
def ar(b, n=4): return f"a[{b}:{b+n-1}]"
def sr(b, n=4): return f"s[{b}:{b+n-1}]"
def mfma(d, A, B, c):
    return f"  v_mfma_f32_16x16x32_bf16 {d}, {A}, {B}, {c}"

STAMP_BASE = 24 << 20
class Stamps:
    def __init__(self, on, kidx): self.on = on; self.kidx = kidx
    def mark(self, a, i):
        if self.on:
            if i == 0: a("  s_memtime s[92:93]")
            a(f"  s_memrealtime s[{70+2*i}:{71+2*i}]\n  s_waitcnt lgkmcnt(0)")
    def flush(self, a, wave_sgpr, ws_lo):
        if not self.on: return
        a(f"""  s_memrealtime s[84:85]
  s_memtime s[82:83]
  s_waitcnt lgkmcnt(0)
  s_sub_u32 s82, s82, s92
  s_add_u32 s88, s{ws_lo}, {STAMP_BASE + self.kidx*(1<<20)}
  s_addc_u32 s89, s{ws_lo+1}, 0
  s_mov_b32 s90, 0x100000
  s_mov_b32 s91, 0x00020000
  s_lshl_b32 s86, s2, 3
  s_add_u32 s86, s86, s{wave_sgpr}
  s_lshl_b32 s86, s86, 5
  v_mov_b32 v40, s70
  v_mov_b32 v41, s72
  v_mov_b32 v42, s74
  v_mov_b32 v43, s76
  v_mov_b32 v44, s78
  v_mov_b32 v45, s80
  v_mov_b32 v46, s82
  v_mov_b32 v47, s84
  v_mov_b32 v48, s86
  s_nop 1
  buffer_store_dwordx4 v[40:43], v48, s[88:91], 0 offen
  buffer_store_dwordx4 v[44:47], v48, s[88:91], 0 offen offset:16""")

class DbgStamps(Stamps):
    def flush(self, a, wave_sgpr, ws_lo, role_sgpr=None):
        if not self.on: return
        lab = f"L_dbgskip_{id(a)}_{len(a.lines)}"
        off = 0
        a(f"""  s_memrealtime s[84:85]
  s_load_dwordx2 s[88:89], s[0:1], 72
  s_waitcnt lgkmcnt(0)
  s_cmp_lg_u32 s{wave_sgpr}, 0
  s_cbranch_scc1 {lab}
  s_sub_u32 s88, s88, {off}
  s_subb_u32 s89, s89, 0
  s_mov_b32 s90, 256
  s_mov_b32 s91, 0x00020000
  s_mov_b64 exec, 1
  s_mov_b32 s96, s74
  s_mov_b32 s97, s76
  s_not_b32 s86, s70""")
        if self.kidx == 0:
            a(f"  s_cmp_eq_u32 s{role_sgpr}, 2\n  s_cselect_b32 s87, 12, 0")
            items = [("s86", 0, False), ("s70", 4, False), ("s72", 8, False), ("s76", 12, True), ("s78", 16, True), ("s84", 20, True)]
        else:
            a(f"""  s_mov_b32 s87, 0
  s_add_u32 s92, s{ws_lo}, {STAMP_BASE}
  s_addc_u32 s93, s{ws_lo+1}, 0
  s_lshl_b32 s94, s2, 8
  s_add_u32 s92, s92, s94
  s_addc_u32 s93, s93, 0
  s_load_dwordx8 s[72:79], s[92:93], 0
  s_waitcnt lgkmcnt(0)
  s_not_b32 s95, s72""")
            items = [("s95", 0, False), ("s72", 4, False), ("s73", 8, False), ("s74", 12, False), ("s75", 16, False), ("s76", 20, False), ("s79", 24, False),
                     ("s86", 36, False), ("s70", 40, False), ("s96", 44, False), ("s97", 48, False), ("s84", 52, False)]
        for reg, o, rel in items:
            a(f"  v_mov_b32 v40, {reg}\n  v_mov_b32 v41, {o}")
            if rel: a("  v_add_u32 v41, s87, v41")
            a("  buffer_atomic_umax v40, v41, s[88:91], 0 offen\n  s_waitcnt vmcnt(0)")
        a(f"{lab}:")
```
